```python
import torch

def _softmax(x, axis=-1):
    return torch.softmax(x, dim=axis)
def _gelu(x):
    return torch.nn.functional.gelu(x, approximate="tanh")
def _silu(x):
    return torch.nn.functional.silu(x)
def _sigmoid(x):
    return torch.sigmoid(x)
def _layernorm(x, axis=-1, eps=1e-5):
    m = x.mean(dim=axis, keepdim=True)
    v = x.var(dim=axis, keepdim=True, unbiased=False)
    return (x - m) / torch.sqrt(v + eps)
def _scatter_add(tgt, idx, src, axis=0):
    return tgt.clone().index_add_(axis, idx, src)
def _segment_sum(src, seg, n):
    out = torch.zeros((n,) + src.shape[1:], dtype=src.dtype)
    return out.index_add_(0, seg, src)
def _pad(x, pw):
    flat = tuple(v for pair in reversed(pw) for v in pair)
    return torch.nn.functional.pad(x, flat)

kernel_name = 'parallel_sum__compressed_kv_cla__dense_activation_gelu__prompt'

def setup_inputs():

    _w = (lambda a: (lambda t: t.to(torch.bfloat16) if t.is_floating_point() else t)(torch.as_tensor(a)))
    def _A_setup():
        B, H, Sq, Sk, D, M = 1, 32, 2048, 2048, 128, 512
        Dc = 4 * D
        return {
            "x": _w((lambda *s: torch.randn(*s, dtype=torch.bfloat16) * 0.05)(B, Sq, M)),
            "c_kv": _w((lambda *s: torch.randn(*s, dtype=torch.bfloat16) * 0.4)(B, Sk, Dc)),
            "w_q": _w((lambda *s: torch.randn(*s, dtype=torch.bfloat16) * 3.2)(M, H, D) * (M ** -0.5)),
            "w_uk": _w((lambda *s: torch.randn(*s, dtype=torch.bfloat16) * 3.2)(Dc, H, D) * (Dc ** -0.5)),
            "w_uv": _w((lambda *s: torch.randn(*s, dtype=torch.bfloat16) * 0.4)(Dc, H, D) * (Dc ** -0.5)),
            "w_o": _w((lambda *s: torch.randn(*s, dtype=torch.bfloat16) * 0.4)(H, D, M) * ((H * D) ** -0.5)),
        }
    _A_in = _A_setup()

    def _B_setup():
        B, S, D, F = 1, 2048, 512, 1376
        return {
            "x": _w((lambda *s: torch.randn(*s, dtype=torch.bfloat16) * 0.05)(B, S, D)),
            "w1": _w((lambda *s: torch.randn(*s, dtype=torch.bfloat16) * 0.4)(D, F) * (D ** -0.5)),
            "b1": _w((lambda *s: torch.randn(*s, dtype=torch.bfloat16) * 12.8)(F) * 0.01),
            "w2": _w((lambda *s: torch.randn(*s, dtype=torch.bfloat16) * 0.2)(F, D) * (F ** -0.5)),
            "b2": _w((lambda *s: torch.randn(*s, dtype=torch.bfloat16) * 3.2)(D) * 0.01),
        }
    _B_in = _B_setup()

    return {
        "A_x": _A_in["x"],
        "A_c_kv": _A_in["c_kv"],
        "A_w_q": _A_in["w_q"],
        "A_w_uk": _A_in["w_uk"],
        "A_w_uv": _A_in["w_uv"],
        "A_w_o": _A_in["w_o"],
        "B_x": _B_in["x"],
        "B_w1": _B_in["w1"],
        "B_b1": _B_in["b1"],
        "B_w2": _B_in["w2"],
        "B_b2": _B_in["b2"],
    }

def reference(A_x, A_c_kv, A_w_q, A_w_uk, A_w_uv, A_w_o, B_x, B_w1, B_b1, B_w2, B_b2):
    def _A_ref(x, c_kv, w_q, w_uk, w_uv, w_o):
        B, Sq, M = x.shape[0], x.shape[1], x.shape[2]
        Sk = c_kv.shape[1]
        H, D = w_q.shape[1], w_q.shape[2]
        q = torch.einsum("bqm,mhd->bhqd", x, w_q)
        k = torch.einsum("bkc,chd->bhkd", c_kv, w_uk)
        v = torch.einsum("bkc,chd->bhkd", c_kv, w_uv)
        scores = torch.einsum("bhqd,bhkd->bhqk", q, k) * (D ** -0.5)
        off = Sk - Sq
        qi = torch.arange(Sq)[:, None]
        kj = torch.arange(Sk)[None, :]
        cmask = kj <= (qi + off)
        scores = torch.where(cmask[None, None], scores, -1e9)
        p = _softmax(scores, axis=-1)
        ctx = torch.einsum("bhqk,bhkd->bhqd", p, v)
        return torch.einsum("bhqd,hdm->bqm", ctx, w_o)

    def _B_ref(x, w1, b1, w2, b2):
        h = torch.einsum("bsd,df->bsf", x, w1) + b1
        h = _gelu(h)
        return torch.einsum("bsf,fd->bsd", h, w2) + b2

    x = A_x
    xn = _layernorm(x, axis=-1)
    return x + _A_ref(xn, A_c_kv, A_w_q, A_w_uk, A_w_uv, A_w_o) + _B_ref(xn, B_w1, B_b1, B_w2, B_b2)
```

```python
import struct


def f32bits(x):
    return struct.unpack("<I", struct.pack("<f", x))[0]


class Asm:
    def __init__(self):
        self.lines = []
        self._uid = 0

    def __call__(self, s=""):
        for ln in s.strip("\n").split("\n"):
            ln = ln.strip()
            if ln:
                self.lines.append("    " + ln)
                if ln.startswith("v_mfma"):
                    self.since_mfma = 0
                elif ln.startswith("s_nop"):
                    self.since_mfma += int(ln.split()[1]) + 1
                else:
                    self.since_mfma += 1

    since_mfma = 1000

    def mfma_gap(self, n):
        need = n - self.since_mfma
        while need > 0:
            k = min(need, 16)
            self("s_nop %d" % (k - 1))
            need -= k

    def c(self, s):
        self.lines.append("    ; " + s)

    def label(self, name):
        self.lines.append(name + ":")

    def uid(self, base):
        self._uid += 1
        return "%s_%d" % (base, self._uid)

    def raw(self, s):
        self.lines.append(s)

    def text(self):
        return "\n".join(self.lines) + "\n"


def kernel_header(a, name):
    a.raw(".globl %s" % name)
    a.raw(".p2align 8")
    a.raw(".type %s,@function" % name)
    a.label(name)


def kernel_desc(name, vgpr, sgpr=102, accum=None, extra=""):
    if accum is None:
        accum = (vgpr + 3) // 4 * 4
    return """.p2align 6
.amdhsa_kernel %s
  .amdhsa_next_free_vgpr %d
  .amdhsa_next_free_sgpr %d
  .amdhsa_accum_offset %d
  .amdhsa_group_segment_fixed_size 0
  .amdhsa_kernarg_size 112
  .amdhsa_user_sgpr_count 2
  .amdhsa_user_sgpr_kernarg_segment_ptr 1
  .amdhsa_system_sgpr_workgroup_id_x 1
%s.end_amdhsa_kernel
""" % (name, vgpr, sgpr, accum, extra)


def srd(a, sd, sbase, nbytes):
    a("s_mov_b32 s%d, s%d" % (sd, sbase))
    a("s_mov_b32 s%d, s%d" % (sd + 1, sbase + 1))
    a("s_mov_b32 s%d, %d" % (sd + 2, nbytes))
    a("s_mov_b32 s%d, 0x00020000" % (sd + 3))


def add64(a, sd, sbase, off):
    a("s_add_u32 s%d, s%d, %d" % (sd, sbase, off))
    a("s_addc_u32 s%d, s%d, 0" % (sd + 1, sbase + 1))
```

```python
import sys, math
sys.path.insert(0, "dev")
from asmlib import *

S = 2048
M = 512
H = 32
D = 128
F = 1376
HD = H * D
KC = HD + F
YS = 5632
YSB = YS * 2

KA_X, KA_CKV, KA_WQ, KA_WUK, KA_WUV, KA_WO, KA_BX, KA_W1, KA_B1, KA_W2, KA_B2, KA_OUT, KA_DBG, KA_WS = \
    [8 * i for i in range(14)]

MB = 1 << 20
WS_XN = 0
WS_Q = 4 * MB
WS_K = 20 * MB
WS_V = 36 * MB
WS_Y = 52 * MB
WS_P = 80 * MB
SZ_XN = S * M * 2
SZ_QKV = S * HD * 2
SZ_Y = S * YSB

LOG2E = 1.4426950408889634


def gen_ln(a):
    name = "ln_kernel"
    kernel_header(a, name)
    a("s_cmp_ge_u32 s2, 512")
    a("s_cbranch_scc1 LN_EXIT")
    a("s_load_dwordx2 s[4:5], s[0:1], %d" % KA_X)
    a("s_load_dwordx2 s[6:7], s[0:1], %d" % KA_WS)
    a("v_lshrrev_b32 v1, 6, v0")
    a("v_and_b32 v2, 63, v0")
    a("s_lshl_b32 s3, s2, 2")
    a("v_add_u32 v1, s3, v1")
    a("v_lshlrev_b32 v3, 10, v1")
    a("v_lshl_add_u32 v3, v2, 4, v3")
    a("s_waitcnt lgkmcnt(0)")
    srd(a, 8, 4, SZ_XN)
    add64(a, 6, 6, WS_XN)
    srd(a, 12, 6, SZ_XN)
    a("buffer_load_dwordx4 v[4:7], v3, s[8:11], 0 offen")
    a("s_waitcnt vmcnt(0)")
    for d in range(4):
        a("v_lshlrev_b32 v%d, 16, v%d" % (8 + 2 * d, 4 + d))
        a("v_and_b32 v%d, 0xffff0000, v%d" % (9 + 2 * d, 4 + d))

    def tree_sum(dst, regs):
        a("v_add_f32 v%d, v%d, v%d" % (dst, regs[0], regs[1]))
        for r in regs[2:]:
            a("v_add_f32 v%d, v%d, v%d" % (dst, dst, r))

    def wave_reduce(v, sdst):
        for sh in (1, 2, 4, 8):
            a("s_nop 1")
            a("v_add_f32_dpp v%d, v%d, v%d row_shr:%d row_mask:0xf bank_mask:0xf bound_ctrl:0" % (v, v, v, sh))
        a("s_nop 1")
        a("v_add_f32_dpp v%d, v%d, v%d row_bcast:15 row_mask:0xa bank_mask:0xf" % (v, v, v))
        a("s_nop 1")
        a("v_add_f32_dpp v%d, v%d, v%d row_bcast:31 row_mask:0xc bank_mask:0xf" % (v, v, v))
        a("s_nop 1")
        a("v_readlane_b32 s%d, v%d, 63" % (sdst, v))
        a("s_nop 3")

    tree_sum(16, list(range(8, 16)))
    wave_reduce(16, 20)
    a("v_mov_b32 v17, s20")
    a("v_mul_f32 v17, 0x3b000000, v17")
    for i in range(8):
        a("v_sub_f32 v%d, v%d, v17" % (24 + i, 8 + i))
    for i in range(8):
        a("v_mul_f32 v%d, v%d, v%d" % (24 + i, 24 + i, 24 + i))
    tree_sum(18, list(range(24, 32)))
    wave_reduce(18, 21)
    a("v_mov_b32 v18, s21")
    a("v_mul_f32 v18, 0x3b000000, v18")
    def bfr(v):
        a("v_cvt_pk_bf16_f32 v%d, v%d, v%d" % (v, v, v))
        a("v_lshlrev_b32 v%d, 16, v%d" % (v, v))
    bfr(17)
    bfr(18)
    a("v_add_f32 v18, 0x3727c5ac, v18")
    bfr(18)
    a("v_sqrt_f32 v18, v18")
    a("s_nop 0")
    bfr(18)
    a("v_rcp_f32 v19, v18")
    for i in range(8):
        a("v_sub_f32 v%d, v%d, v17" % (24 + i, 8 + i))
    for i in range(0, 8, 2):
        a("v_cvt_pk_bf16_f32 v%d, v%d, v%d" % (32 + i // 2, 24 + i, 25 + i))
    for i in range(4):
        a("v_lshlrev_b32 v%d, 16, v%d" % (24 + 2 * i, 32 + i))
        a("v_and_b32 v%d, 0xffff0000, v%d" % (25 + 2 * i, 32 + i))
    for i in range(8):
        a("v_mul_f32 v%d, v%d, v19" % (36 + i, 24 + i))
    for i in range(8):
        a("v_fma_f32 v%d, -v%d, v18, v%d" % (44 + i, 36 + i, 24 + i))
    for i in range(8):
        a("v_fma_f32 v%d, v%d, v19, v%d" % (36 + i, 44 + i, 36 + i))
    for i in range(4):
        a("v_cvt_pk_bf16_f32 v%d, v%d, v%d" % (4 + i, 36 + 2 * i, 37 + 2 * i))
    a("buffer_store_dwordx4 v[4:7], v3, s[12:15], 0 offen")
    a.label("LN_EXIT")
    a("s_endpgm")
    return name, 64


class LdsQueue:
    def __init__(self, a):
        self.a = a
        self.n_issued = 0
        self.done_upto = -1

    def issue(self):
        self.n_issued += 1
        return self.n_issued - 1

    def need(self, idx):
        if idx <= self.done_upto:
            return
        n = self.n_issued - 1 - idx
        n = min(n, 15)
        self.a("s_waitcnt lgkmcnt(%d)" % n)
        self.done_upto = self.n_issued - 1 - n

    def drain(self):
        if self.done_upto < self.n_issued - 1:
            self.a("s_waitcnt lgkmcnt(0)")
            self.done_upto = self.n_issued - 1


class GemmCfg:
    def __init__(self, NB):
        self.NB = NB
        self.MBk = 2
        self.BN = 2 * 32 * NB
        self.BM = 128
        self.RB = self.BN * 2
        self.WBYTES = 32 * self.RB
        self.XBYTES = self.BM * 64
        self.SLOT = self.WBYTES + self.XBYTES
        self.NSLOT = 3
        self.RPI = 1024 // self.RB
        self.NWI = self.WBYTES // 1024
        self.NXI = self.XBYTES // 1024
        self.NWPW = self.NWI // 4
        self.NXPW = self.NXI // 4
        self.ND = self.NWPW + self.NXPW
        self.V_AADDR = 2
        self.V_BADDR = 6
        self.V_DMAW = 8
        self.V_DMAX = 9
        self.V_T = 10
        self.FA = 16
        self.FB = self.FA + 2 * NB * 4
        self.ACC = 64
        self.NACC = NB * 2 * 16
        self.V_EP = self.ACC + self.NACC

    def acc(self, nb, mb):
        return self.ACC + (nb * 2 + mb) * 16

    def fa(self, s, nb):
        return self.FA + (s * self.NB + nb) * 4

    def fb(self, s, mb):
        return self.FB + (s * 2 + mb) * 4


S_W = 3
SRD_X, SRD_W, SRD_O, SRD_B = 8, 12, 16, 20
S_WOFF = 24
S_XOFF = 28
S_STAGE = 30
S_NST = 31
S_CUR = 32
S_PF = 33
S_WINC = 34
S_DELTA = 35
S_T0 = 36
S_T1 = 37
S_PFW = 38
S_PFX = 39
S_WSTR = 40
S_XSTR = 41
S_FLAG = 42
S_MT = 43
S_NT = 44
S_OCOL = 45
S_OSTR = 46
S_WN = 47
S_WM = 48
S_P = 50


def gemm_lane_setup(a, c):
    T = c.V_T
    a.c("lane decomposition")
    a("v_and_b32 v1, 63, v0")
    a("v_lshrrev_b32 v%d, 5, v1" % (T))
    a("v_and_b32 v%d, 15, v1" % (T + 1))
    a("v_lshrrev_b32 v%d, 2, v%d" % (T + 2, T + 1))
    a("v_and_b32 v%d, 3, v%d" % (T + 3, T + 1))
    a("v_bfe_u32 v%d, v1, 4, 1" % (T + 4))
    a("v_lshl_add_u32 v%d, v%d, 3, v%d" % (T + 5, T, T + 2))
    a("v_mul_u32_u24 v%d, %d, v%d" % (T + 5, c.RB, T + 5))
    a("v_lshlrev_b32 v%d, 5, v%d" % (T + 4, T + 4))
    a("v_lshl_add_u32 v%d, v%d, 3, v%d" % (T + 4, T + 3, T + 4))
    a("v_add_u32 v%d, v%d, v%d" % (T + 5, T + 5, T + 4))
    a("s_mul_i32 s%d, s%d, %d" % (S_T0, S_WN, c.NB))
    for nb in range(c.NB):
        a("s_add_u32 s%d, s%d, %d" % (S_T1, S_T0, nb))
        a("v_xor_b32 v%d, s%d, v%d" % (c.V_AADDR + nb, S_T1, T + 2))
        a("v_lshl_add_u32 v%d, v%d, 6, v%d" % (c.V_AADDR + nb, c.V_AADDR + nb, T + 5))
    a("v_and_b32 v%d, 31, v1" % (T + 2))
    a("v_bfe_u32 v%d, v%d, 2, 2" % (T + 3, T + 2))
    a("s_lshl_b32 s%d, s%d, 6" % (S_T0, S_WM))
    a("v_add_u32 v%d, s%d, v%d" % (T + 2, S_T0, T + 2))
    a("v_lshlrev_b32 v%d, 6, v%d" % (T + 2, T + 2))
    a("v_add_u32 v%d, %d, v%d" % (T + 2, c.WBYTES, T + 2))
    for s in range(2):
        a("v_add_u32 v%d, %d, v%d" % (T + 4, 2 * s, T))
        a("v_xor_b32 v%d, v%d, v%d" % (T + 4, T + 4, T + 3))
        a("v_lshl_add_u32 v%d, v%d, 4, v%d" % (c.V_BADDR + s, T + 4, T + 2))
    CR = c.RB // 16
    sh = int(math.log2(CR))
    a("v_lshrrev_b32 v%d, %d, v1" % (T, sh))
    a("v_and_b32 v%d, %d, v1" % (T + 1, CR - 1))
    a("v_lshrrev_b32 v%d, 2, v%d" % (T + 2, T + 1))
    if c.RPI == 2:
        a("s_and_b32 s%d, s%d, 1" % (S_T0, S_W))
        a("s_lshl_b32 s%d, s%d, 1" % (S_T0, S_T0))
        a("v_add_u32 v%d, s%d, v%d" % (T + 3, S_T0, T))
    else:
        assert c.RPI == 4
        a("v_mov_b32 v%d, v%d" % (T + 3, T))
    a("v_xor_b32 v%d, v%d, v%d" % (T + 2, T + 2, T + 3))
    a("v_and_b32 v%d, 3, v%d" % (T + 1, T + 1))
    a("v_lshlrev_b32 v%d, 4, v%d" % (T + 1, T + 1))
    a("v_lshl_add_u32 v%d, v%d, 6, v%d" % (T + 1, T + 2, T + 1))
    a("v_mul_lo_u32 v%d, v%d, s%d" % (T, T, S_WSTR))
    a("v_add_u32 v%d, v%d, v%d" % (c.V_DMAW, T, T + 1))
    a("v_lshrrev_b32 v%d, 2, v1" % T)
    a("v_mul_lo_u32 v%d, v%d, s%d" % (T, T, S_XSTR))
    a("v_and_b32 v%d, 3, v1" % (T + 1))
    a("v_bfe_u32 v%d, v1, 4, 2" % (T + 2))
    a("v_xor_b32 v%d, v%d, v%d" % (T + 1, T + 1, T + 2))
    a("v_lshl_add_u32 v%d, v%d, 4, v%d" % (c.V_DMAX, T + 1, T))


def gemm_dma_piece(a, c, idx):
    if idx < c.NWPW:
        j = idx
        a("s_add_u32 m0, s%d, %d" % (S_PFW, 4096 * j))
        a("s_nop 0")
        a("buffer_load_dwordx4 v%d, s[%d:%d], s%d offen lds" % (c.V_DMAW, SRD_W, SRD_W + 3, S_WOFF + j))
        a("s_add_u32 s%d, s%d, s%d" % (S_WOFF + j, S_WOFF + j, S_WINC))
    else:
        j = idx - c.NWPW
        a("s_add_u32 m0, s%d, %d" % (S_PFX, 1024 * j))
        a("s_nop 0")
        a("buffer_load_dwordx4 v%d, s[%d:%d], s%d offen lds" % (c.V_DMAX, SRD_X, SRD_X + 3, S_XOFF + j))
        a("s_add_u32 s%d, s%d, 64" % (S_XOFF + j, S_XOFF + j))


def gemm_pf_advance(a, c):
    a("s_add_u32 s%d, s%d, %d" % (S_PF, S_PF, c.SLOT))
    a("s_cmp_eq_u32 s%d, %d" % (S_PF, c.NSLOT * c.SLOT))
    a("s_cselect_b32 s%d, 0, s%d" % (S_PF, S_PF))
    a("s_lshl_b32 s%d, s%d, 10" % (S_T0, S_W))
    a("s_add_u32 s%d, s%d, s%d" % (S_PFW, S_PF, S_T0))
    a("s_lshl_b32 s%d, s%d, 11" % (S_T0, S_W))
    a("s_add_u32 s%d, s%d, s%d" % (S_PFX, S_PF, S_T0))
    a("s_add_u32 s%d, s%d, %d" % (S_PFX, S_PFX, c.WBYTES))


def gemm_stage(a, c, issue, wait_n, hook=None):
    a("s_waitcnt vmcnt(%d)" % wait_n)
    a("s_barrier")
    q = LdsQueue(a)
    ra = {}
    rb = {}
    for s in range(2):
        order = []
        order.append(("A", 0))
        order.append(("B", 0))
        order.append(("B", 1))
        for nb in range(1, c.NB):
            order.append(("A", nb))
        for kind, x in order:
            if kind == "A":
                f = c.fa(s, x)
                off = s * 16 * c.RB
                a("ds_read_b64_tr_b16 v[%d:%d], v%d offset:%d" % (f, f + 1, c.V_AADDR + x, off))
                q.issue()
                a("ds_read_b64_tr_b16 v[%d:%d], v%d offset:%d" % (f + 2, f + 3, c.V_AADDR + x, off + 4 * c.RB))
                ra[(s, x)] = q.issue()
            else:
                f = c.fb(s, x)
                a("ds_read_b128 v[%d:%d], v%d offset:%d" % (f, f + 3, c.V_BADDR + s, x * 2048))
                rb[(s, x)] = q.issue()
    a("s_add_u32 s%d, s%d, %d" % (S_T0, S_CUR, c.SLOT))
    a("s_cmp_eq_u32 s%d, %d" % (S_T0, c.NSLOT * c.SLOT))
    a("s_cselect_b32 s%d, 0, s%d" % (S_T0, S_T0))
    a("s_sub_u32 s%d, s%d, s%d" % (S_DELTA, S_T0, S_CUR))
    a("s_mov_b32 s%d, s%d" % (S_CUR, S_T0))
    for nb in range(c.NB):
        a("v_add_u32 v%d, s%d, v%d" % (c.V_AADDR + nb, S_DELTA, c.V_AADDR + nb))
    for s in range(2):
        a("v_add_u32 v%d, s%d, v%d" % (c.V_BADDR + s, S_DELTA, c.V_BADDR + s))
    nm = 0
    pieces = list(range(c.ND)) if issue else []
    for s in range(2):
        for nb in range(c.NB):
            for mb in range(2):
                q.need(max(ra[(s, nb)], rb[(s, mb)]))
                acc = c.acc(nb, mb)
                a("v_mfma_f32_32x32x16_bf16 v[%d:%d], v[%d:%d], v[%d:%d], v[%d:%d]" % (
                    acc, acc + 15, c.fa(s, nb), c.fa(s, nb) + 3, c.fb(s, mb), c.fb(s, mb) + 3, acc, acc + 15))
                nm += 1
                if pieces and nm % 2 == 1:
                    gemm_dma_piece(a, c, pieces.pop(0))
    while pieces:
        gemm_dma_piece(a, c, pieces.pop(0))
    if issue:
        gemm_pf_advance(a, c)
    if hook:
        hook()


def gemm_mainloop(a, c, tag, stage_hook=None):
    a.c("zero accumulators")
    for r in range(c.NACC):
        a("v_mov_b32 v%d, 0" % (c.ACC + r))
    a("s_mov_b32 s%d, 0" % S_CUR)
    a("s_mov_b32 s%d, %d" % (S_PF, (c.NSLOT - 1) * c.SLOT))
    gemm_pf_advance(a, c)
    for st in range(2):
        for p in range(c.ND):
            gemm_dma_piece(a, c, p)
        gemm_pf_advance(a, c)
        if stage_hook:
            stage_hook()
    a("s_mov_b32 s%d, 0" % S_STAGE)
    a("s_sub_u32 s%d, s%d, 2" % (S_NST, S_NST))
    a.label("L_%s_loop" % tag)
    gemm_stage(a, c, True, c.ND, stage_hook)
    a("s_add_u32 s%d, s%d, 1" % (S_STAGE, S_STAGE))
    a("s_cmp_lt_u32 s%d, s%d" % (S_STAGE, S_NST))
    a("s_cbranch_scc1 L_%s_loop" % tag)
    gemm_stage(a, c, False, c.ND)
    gemm_stage(a, c, False, 0)
    a("s_nop 15")
    a("s_nop 7")


def gemm_store_bf16(a, c, tag, gelu):
    NB = c.NB
    RS = NB * 64 + 16
    T = c.V_T
    EP = c.V_EP
    a("s_barrier")
    a("s_mul_i32 s%d, s%d, %d" % (S_T0, S_W, 64 * RS))
    a("v_and_b32 v%d, 31, v1" % T)
    a("v_mul_u32_u24 v%d, %d, v%d" % (T, RS, T))
    a("v_lshrrev_b32 v%d, 5, v1" % (T + 1))
    a("v_lshl_add_u32 v%d, v%d, 3, v%d" % (T, T + 1, T))
    a("v_add_u32 v%d, s%d, v%d" % (T, S_T0, T))
    CH = NB * 4
    shc = int(math.log2(CH))
    a("v_lshrrev_b32 v%d, %d, v1" % (T + 1, shc))
    a("v_and_b32 v%d, %d, v1" % (T + 2, CH - 1))
    a("v_mul_u32_u24 v%d, %d, v%d" % (T + 3, RS, T + 1))
    a("v_lshl_add_u32 v%d, v%d, 4, v%d" % (T + 3, T + 2, T + 3))
    a("v_add_u32 v%d, s%d, v%d" % (T + 3, S_T0, T + 3))
    a("v_mul_lo_u32 v%d, v%d, s%d" % (T + 1, T + 1, S_OSTR))
    a("v_lshl_add_u32 v%d, v%d, 4, v%d" % (T + 1, T + 2, T + 1))
    if gelu:
        BR = EP + 16
        a("v_lshrrev_b32 v%d, 5, v1" % (T + 2))
        a("v_lshlrev_b32 v%d, 3, v%d" % (T + 2, T + 2))
        a("s_mul_i32 s%d, s%d, %d" % (S_T1, S_WN, NB * 64))
        a("s_add_u32 s%d, s%d, s%d" % (S_T1, S_T1, S_OCOL))
        a("s_sub_u32 s%d, s%d, %d" % (S_T1, S_T1, HD * 2))
        for nb in range(NB):
            for qd in range(4):
                r = BR + (nb * 4 + qd) * 2
                a("buffer_load_dwordx2 v[%d:%d], v%d, s[%d:%d], s%d offen offset:%d" % (
                    r, r + 1, T + 2, SRD_B, SRD_B + 3, S_T1, nb * 64 + qd * 16))
        a("s_mov_b32 s%d, 0x%08x" % (S_T0 + 0, f32bits(-2.0 * 0.7978845608028654 * LOG2E * 0.044715)))
        a("v_mov_b32 v%d, 0x%08x" % (EP + 15, f32bits(-2.0 * 0.7978845608028654 * LOG2E)))
        a("s_waitcnt vmcnt(0)")
    k = 0
    for nb in range(NB):
        if gelu:
            pass
        for mb in range(2):
            for qd in range(4):
                r0 = c.acc(nb, mb) + 4 * qd
                if gelu:
                    br = EP + 16 + (nb * 4 + qd) * 2
                    U = EP + 8
                    a("v_lshlrev_b32 v%d, 16, v%d" % (U, br))
                    a("v_and_b32 v%d, 0xffff0000, v%d" % (U + 1, br))
                    a("v_lshlrev_b32 v%d, 16, v%d" % (U + 2, br + 1))
                    a("v_and_b32 v%d, 0xffff0000, v%d" % (U + 3, br + 1))
                    for e in range(4):
                        a("v_add_f32 v%d, v%d, v%d" % (r0 + e, r0 + e, U + e))
                    for e in range(4):
                        a("v_mul_f32 v%d, v%d, v%d" % (EP + e, r0 + e, r0 + e))
                    for e in range(4):
                        a("v_fma_f32 v%d, v%d, s%d, v%d" % (EP + e, EP + e, S_T0, EP + 15))
                    for e in range(4):
                        a("v_mul_f32 v%d, v%d, v%d" % (EP + e, EP + e, r0 + e))
                    for e in range(4):
                        a("v_exp_f32 v%d, v%d" % (EP + e, EP + e))
                    for e in range(4):
                        a("v_add_f32 v%d, 1.0, v%d" % (EP + e, EP + e))
                    for e in range(4):
                        a("v_rcp_f32 v%d, v%d" % (EP + e, EP + e))
                    for e in range(4):
                        a("v_mul_f32 v%d, v%d, v%d" % (r0 + e, r0 + e, EP + e))
                tp = EP + 4 + 2 * (k & 1)
                a("v_cvt_pk_bf16_f32 v%d, v%d, v%d" % (tp, r0, r0 + 1))
                a("v_cvt_pk_bf16_f32 v%d, v%d, v%d" % (tp + 1, r0 + 2, r0 + 3))
                a("ds_write_b64 v%d, v[%d:%d] offset:%d" % (T, tp, tp + 1, mb * 32 * RS + nb * 64 + qd * 16))
                k += 1
    a("s_waitcnt lgkmcnt(0)")
    RPI2 = 1024 // (NB * 64)
    nins = 64 // RPI2
    a("s_lshl_b32 s%d, s%d, 7" % (S_T0, S_MT))
    a("s_lshl_b32 s%d, s%d, 6" % (S_T1, S_WM))
    a("s_add_u32 s%d, s%d, s%d" % (S_T0, S_T0, S_T1))
    a("s_mul_i32 s%d, s%d, s%d" % (S_T0, S_T0, S_OSTR))
    a("s_add_u32 s%d, s%d, s%d" % (S_T0, S_T0, S_OCOL))
    a("s_mul_i32 s%d, s%d, %d" % (S_T1, S_WN, NB * 64))
    a("s_add_u32 s%d, s%d, s%d" % (S_T0, S_T0, S_T1))
    a("s_mul_i32 s%d, s%d, %d" % (S_T1, S_OSTR, RPI2))
    DQ = EP + 4
    q = LdsQueue(a)
    idx = []
    PIPE = 4
    for j in range(nins + PIPE):
        if j < nins:
            d = DQ + 4 * (j % PIPE)
            a("ds_read_b128 v[%d:%d], v%d offset:%d" % (d, d + 3, T + 3, j * RPI2 * RS))
            idx.append(q.issue())
        if j >= PIPE - 1 and j - (PIPE - 1) < nins:
            jj = j - (PIPE - 1)
            d = DQ + 4 * (jj % PIPE)
            q.need(idx[jj])
            a("buffer_store_dwordx4 v[%d:%d], v%d, s[%d:%d], s%d offen" % (d, d + 3, T + 1, SRD_O, SRD_O + 3, S_T0))
            a("s_add_u32 s%d, s%d, s%d" % (S_T0, S_T0, S_T1))


def gen_gemm_a(a):
    name = "gemma_kernel"
    c = GemmCfg(4)
    kernel_header(a, name)
    NWG = 8 * 16 * 7
    a("s_cmp_ge_u32 s2, %d" % NWG)
    a("s_cbranch_scc1 GA_EXIT")
    a("s_and_b32 s%d, s2, 7" % S_T0)
    a("s_lshr_b32 s%d, s2, 3" % S_T1)
    a("s_and_b32 s%d, s%d, 15" % (S_MT, S_T1))
    a("s_lshr_b32 s%d, s%d, 4" % (S_T1, S_T1))
    a("s_lshl_b32 s%d, s%d, 3" % (S_T1, S_T1))
    a("s_add_u32 s%d, s%d, s%d" % (S_NT, S_T1, S_T0))
    a("s_cmp_ge_u32 s%d, 54" % S_NT)
    a("s_cbranch_scc1 GA_EXIT")
    P = S_P
    a("s_load_dwordx2 s[%d:%d], s[0:1], %d" % (P, P + 1, KA_CKV))
    a("s_load_dwordx2 s[%d:%d], s[0:1], %d" % (P + 2, P + 3, KA_WQ))
    a("s_load_dwordx2 s[%d:%d], s[0:1], %d" % (P + 4, P + 5, KA_WUK))
    a("s_load_dwordx2 s[%d:%d], s[0:1], %d" % (P + 6, P + 7, KA_WUV))
    a("s_load_dwordx2 s[%d:%d], s[0:1], %d" % (P + 8, P + 9, KA_W1))
    a("s_load_dwordx2 s[%d:%d], s[0:1], %d" % (P + 10, P + 11, KA_B1))
    a("s_load_dwordx2 s[%d:%d], s[0:1], %d" % (P + 12, P + 13, KA_WS))
    a("v_lshrrev_b32 v1, 6, v0")
    a("s_nop 0")
    a("v_readfirstlane_b32 s%d, v1" % S_W)
    a("s_nop 3")
    a("s_lshr_b32 s%d, s%d, 1" % (S_WN, S_W))
    a("s_and_b32 s%d, s%d, 1" % (S_WM, S_W))
    a("s_waitcnt lgkmcnt(0)")
    WS = P + 12
    srd(a, SRD_B, P + 10, F * 2)
    a("s_mov_b32 s%d, 1024" % S_XSTR)
    a("s_cmp_lt_u32 s%d, 6" % S_NT)
    a("s_cbranch_scc1 GA_FFN")
    a("s_sub_u32 s%d, s%d, 6" % (S_T0, S_NT))
    a("s_lshr_b32 s%d, s%d, 4" % (S_T1, S_T0))
    a("s_and_b32 s%d, s%d, 15" % (S_T0, S_T0))
    a("s_lshl_b32 s%d, s%d, 9" % (S_OCOL, S_T0))
    a("s_mov_b32 s%d, 0" % S_FLAG)
    a("s_mov_b32 s%d, 8192" % S_WSTR)
    a("s_mov_b32 s%d, 8192" % S_OSTR)
    a("s_cmp_eq_u32 s%d, 1" % S_T1)
    a("s_cselect_b32 s%d, s%d, s%d" % (P + 14, P + 4, P + 2))
    a("s_cselect_b32 s%d, s%d, s%d" % (P + 15, P + 5, P + 3))
    a("s_cmp_eq_u32 s%d, 2" % S_T1)
    a("s_cselect_b32 s%d, s%d, s%d" % (P + 14, P + 6, P + 14))
    a("s_cselect_b32 s%d, s%d, s%d" % (P + 15, P + 7, P + 15))
    srd(a, SRD_W, P + 14, M * HD * 2)
    add64(a, P + 16, WS, WS_XN)
    a("s_cmp_eq_u32 s%d, 0" % S_T1)
    a("s_cselect_b32 s%d, s%d, s%d" % (P + 16, P + 16, P))
    a("s_cselect_b32 s%d, s%d, s%d" % (P + 17, P + 17, P + 1))
    srd(a, SRD_X, P + 16, SZ_XN)
    a("s_mul_i32 s%d, s%d, %d" % (S_T1, S_T1, WS_K - WS_Q))
    a("s_add_u32 s%d, s%d, %d" % (S_T1, S_T1, WS_Q))
    a("s_add_u32 s%d, s%d, s%d" % (P + 18, WS, S_T1))
    a("s_addc_u32 s%d, s%d, 0" % (P + 19, WS + 1))
    srd(a, SRD_O, P + 18, SZ_QKV)
    a("s_branch GA_COMMON")
    a.label("GA_FFN")
    a("s_lshl_b32 s%d, s%d, 9" % (S_T0, S_NT))
    a("s_add_u32 s%d, s%d, %d" % (S_OCOL, S_T0, HD * 2))
    a("s_mov_b32 s%d, 1" % S_FLAG)
    a("s_mov_b32 s%d, %d" % (S_WSTR, F * 2))
    a("s_mov_b32 s%d, %d" % (S_OSTR, YSB))
    srd(a, SRD_W, P + 8, M * F * 2)
    add64(a, P + 16, WS, WS_XN)
    srd(a, SRD_X, P + 16, SZ_XN)
    add64(a, P + 18, WS, WS_Y)
    srd(a, SRD_O, P + 18, SZ_Y)
    a.label("GA_COMMON")
    a("s_cmp_eq_u32 s%d, 1" % S_FLAG)
    a("s_cselect_b32 s%d, %d, 0" % (S_T0, HD * 2))
    a("s_sub_u32 s%d, s%d, s%d" % (S_T1, S_OCOL, S_T0))
    for j in range(c.NWPW):
        a("s_add_u32 s%d, s%d, %d" % (S_T0, S_W, 4 * j))
        a("s_mul_i32 s%d, s%d, %d" % (S_T0, S_T0, c.RPI))
        a("s_mul_i32 s%d, s%d, s%d" % (S_T0, S_T0, S_WSTR))
        a("s_add_u32 s%d, s%d, s%d" % (S_WOFF + j, S_T0, S_T1))
    a("s_mul_i32 s%d, s%d, 32" % (S_WINC, S_WSTR))
    for j in range(c.NXPW):
        a("s_lshl_b32 s%d, s%d, 7" % (S_T0, S_MT))
        a("s_lshl_b32 s%d, s%d, 5" % (S_T1, S_W))
        a("s_add_u32 s%d, s%d, s%d" % (S_T0, S_T0, S_T1))
        a("s_add_u32 s%d, s%d, %d" % (S_T0, S_T0, 16 * j))
        a("s_mul_i32 s%d, s%d, s%d" % (S_XOFF + j, S_T0, S_XSTR))
    gemm_lane_setup(a, c)
    a("s_mov_b32 s%d, %d" % (S_NST, M // 32))
    gemm_mainloop(a, c, "ga")
    a("s_cmp_eq_u32 s%d, 1" % S_FLAG)
    a("s_cbranch_scc1 GA_EP_GELU")
    gemm_store_bf16(a, c, "ga0", False)
    a("s_endpgm")
    a.label("GA_EP_GELU")
    gemm_store_bf16(a, c, "ga1", True)
    a.label("GA_EXIT")
    a("s_endpgm")
    return name, 256, c.NSLOT * c.SLOT, NWG


SCALE_C = (D ** -0.5) * LOG2E
AT_LDS_ML = 131072
AT_LDS = 131072 + 4 * 512

A_W, A_HF, A_WQ, A_HD, A_P, A_QB, A_IT, A_PHASE = 3, 4, 5, 6, 7, 24, 25, 26
ASRD_Q, ASRD_K, ASRD_V, ASRD_Y = 8, 12, 16, 20
A_STG = 27
A_PFK = 28
A_KOFF = 29
A_C = 30
A_T0, A_T1, A_T2 = 31, 32, 33
A_HASNEXT = 34
A_MASK = 36
A_P0 = 40

VK = 2
VV = 10
VDK, VDV = 14, 15
VM, VL, VTHR = 16, 17, 18
VT = 19
FV = 32
FK = 64
FQ = 96
OA = 128
SA = 192
PF = 224
VX = 240


def attn_dma_issue(a, j):
    isv = j >= 4
    jj = j & 3
    a("s_add_u32 m0, s%d, %d" % (A_PFK, jj * 4096 + (16384 if isv else 0)))
    a("s_add_u32 s%d, s%d, %d" % (A_T0, A_KOFF, jj * 16 * 8192))
    a("buffer_load_dwordx4 v%d, s[%d:%d], s%d offen lds" % (
        VDV if isv else VDK, ASRD_V if isv else ASRD_K, (ASRD_V if isv else ASRD_K) + 3, A_T0))


def gen_attn(a):
    name = "attn_kernel"
    kernel_header(a, name)
    a("s_cmp_ge_u32 s2, 256")
    a("s_cbranch_scc1 AT_EXIT")
    a("s_load_dwordx2 s[%d:%d], s[0:1], %d" % (A_P0, A_P0 + 1, KA_WS))
    a("v_lshrrev_b32 v1, 6, v0")
    a("s_nop 0")
    a("v_readfirstlane_b32 s%d, v1" % A_W)
    a("v_and_b32 v1, 63, v0")
    a("s_nop 3")
    a("s_lshr_b32 s%d, s%d, 2" % (A_HF, A_W))
    a("s_and_b32 s%d, s%d, 3" % (A_WQ, A_W))
    a("s_and_b32 s%d, s2, 7" % A_T0)
    a("s_lshr_b32 s%d, s2, 3" % A_T1)
    a("s_and_b32 s%d, s%d, 3" % (A_HD, A_T1))
    a("s_lshl_b32 s%d, s%d, 3" % (A_HD, A_HD))
    a("s_add_u32 s%d, s%d, s%d" % (A_HD, A_HD, A_T0))
    a("s_lshr_b32 s%d, s%d, 2" % (A_P, A_T1))
    a("s_mov_b32 s%d, 0x%08x" % (A_C, f32bits(SCALE_C)))
    a("s_waitcnt lgkmcnt(0)")
    for srdn, off, sz in ((ASRD_Q, WS_Q, SZ_QKV), (ASRD_K, WS_K, SZ_QKV), (ASRD_V, WS_V, SZ_QKV), (ASRD_Y, WS_Y, SZ_Y)):
        add64(a, A_P0 + 2, A_P0, off)
        srd(a, srdn, A_P0 + 2, sz)
    T = VT
    a.c("lane decomposition")
    a("v_lshrrev_b32 v%d, 5, v1" % T)
    a("v_and_b32 v%d, 31, v1" % (T + 1))
    a("v_and_b32 v%d, 15, v1" % (T + 2))
    a("s_lshl_b32 s%d, s%d, 16" % (A_T0, A_HF))
    a("v_xor_b32 v%d, v%d, v%d" % (T + 3, T, T + 2))
    a("v_lshlrev_b32 v%d, 8, v%d" % (T + 4, T + 1))
    a("v_add_u32 v%d, s%d, v%d" % (T + 4, A_T0, T + 4))
    for s in range(8):
        a("v_xor_b32 v%d, %d, v%d" % (VK + s, 2 * s, T + 3))
        a("v_lshl_add_u32 v%d, v%d, 4, v%d" % (VK + s, VK + s, T + 4))
    a("v_lshrrev_b32 v%d, 2, v%d" % (T + 3, T + 2))
    a("v_and_b32 v%d, 3, v%d" % (T + 4, T + 2))
    a("v_bfe_u32 v%d, v1, 4, 1" % (T + 5))
    a("v_lshl_add_u32 v%d, v%d, 2, v%d" % (T + 6, T, T + 3))
    a("v_lshlrev_b32 v%d, 8, v%d" % (T + 6, T + 6))
    a("v_lshlrev_b32 v%d, 5, v%d" % (T + 5, T + 5))
    a("v_lshl_add_u32 v%d, v%d, 3, v%d" % (T + 5, T + 4, T + 5))
    a("v_add3_u32 v%d, v%d, v%d, s%d" % (T + 6, T + 6, T + 5, A_T0))
    a("v_add_u32 v%d, 16384, v%d" % (T + 6, T + 6))
    for db in range(4):
        a("v_xor_b32 v%d, %d, v%d" % (VV + db, db, T + 3))
        a("v_lshl_add_u32 v%d, v%d, 6, v%d" % (VV + db, VV + db, T + 6))
    a("v_lshrrev_b32 v%d, 4, v1" % (T + 3))
    a("s_lshl_b32 s%d, s%d, 2" % (A_T1, A_WQ))
    a("v_add_u32 v%d, s%d, v%d" % (T + 4, A_T1, T + 3))
    a("v_lshlrev_b32 v%d, 13, v%d" % (T + 5, T + 4))
    a("v_xor_b32 v%d, v%d, v%d" % (T + 6, T + 2, T + 4))
    a("v_lshl_add_u32 v%d, v%d, 4, v%d" % (VDK, T + 6, T + 5))
    a("v_lshlrev_b32 v%d, 2, v%d" % (T + 6, T + 3))
    a("v_xor_b32 v%d, v%d, v%d" % (T + 6, T + 2, T + 6))
    a("v_lshl_add_u32 v%d, v%d, 4, v%d" % (VDV, T + 6, T + 5))
    a("s_lshl_b32 s%d, s%d, 5" % (A_T1, A_WQ))
    a("s_lshl_b32 s%d, s%d, 6" % (A_T2, A_HF))
    a("s_sub_u32 s%d, s%d, s%d" % (A_T1, A_T1, A_T2))
    a("v_add_u32 v%d, s%d, v%d" % (VTHR, A_T1, T + 1))
    a("v_lshlrev_b32 v%d, 2, v%d" % (T + 3, T))
    a("v_sub_u32 v%d, v%d, v%d" % (VTHR, VTHR, T + 3))
    a("v_mov_b32 v%d, 0xff800000" % VX)
    a("v_lshlrev_b32 v%d, 13, v%d" % (VX + 1, T + 1))
    a("v_lshl_add_u32 v%d, v%d, 4, v%d" % (VX + 1, T, VX + 1))
    a("s_lshl_b32 s%d, s%d, 18" % (A_T1, A_WQ))
    a("v_add_u32 v%d, s%d, v%d" % (VX + 1, A_T1, VX + 1))
    a("s_mov_b32 s%d, 0" % A_STG)
    a("s_mov_b32 s%d, 0" % A_PHASE)
    a("s_lshl_b32 s%d, s%d, 16" % (A_T0, A_HF))
    a("s_lshl_b32 s%d, s%d, 10" % (A_T1, A_WQ))
    a("s_add_u32 s%d, s%d, s%d" % (A_PFK, A_T0, A_T1))
    a("s_lshl_b32 s%d, s%d, 19" % (A_KOFF, A_HF))
    a("s_lshl_b32 s%d, s%d, 8" % (A_T0, A_HD))
    a("s_add_u32 s%d, s%d, s%d" % (A_KOFF, A_KOFF, A_T0))
    for j in range(8):
        attn_dma_issue(a, j)
    a("s_xor_b32 s%d, s%d, 32768" % (A_PFK, A_PFK))

    a.label("AT_QBLOCK")
    a("s_sub_u32 s%d, 15, s%d" % (A_T0, A_P))
    a("s_cmp_eq_u32 s%d, 0" % A_PHASE)
    a("s_cselect_b32 s%d, s%d, s%d" % (A_QB, A_T0, A_P))
    a("s_lshl_b32 s%d, s%d, 20" % (A_T0, A_QB))
    a("s_lshl_b32 s%d, s%d, 8" % (A_T1, A_HD))
    a("s_add_u32 s%d, s%d, s%d" % (A_T0, A_T0, A_T1))
    for s in range(8):
        a("buffer_load_dwordx4 v[%d:%d], v%d, s[%d:%d], s%d offen offset:%d" % (
            FQ + 4 * s, FQ + 4 * s + 3, VX + 1, ASRD_Q, ASRD_Q + 3, A_T0, 32 * s))
    for r in range(64):
        a("v_mov_b32 v%d, 0" % (OA + r))
    a("v_mov_b32 v%d, 0xf149f2ca" % VM)
    a("v_mov_b32 v%d, 0" % VL)
    a("s_mov_b32 s%d, 0" % A_IT)

    a.label("AT_ITER")
    a("s_cmp_lt_u32 s%d, s%d" % (A_IT, A_QB))
    a("s_cbranch_scc1 AT_NEXT_SAME")
    a("s_mov_b32 s%d, 0" % A_HASNEXT)
    a("s_cmp_eq_u32 s%d, 0" % A_PHASE)
    a("s_cbranch_scc0 AT_NEXT_DONE")
    a("s_mov_b32 s%d, 1" % A_HASNEXT)
    a("s_lshl_b32 s%d, s%d, 19" % (A_KOFF, A_HF))
    a("s_lshl_b32 s%d, s%d, 8" % (A_T0, A_HD))
    a("s_add_u32 s%d, s%d, s%d" % (A_KOFF, A_KOFF, A_T0))
    a("s_branch AT_NEXT_DONE")
    a.label("AT_NEXT_SAME")
    a("s_mov_b32 s%d, 1" % A_HASNEXT)
    a("s_add_u32 s%d, s%d, %d" % (A_KOFF, A_KOFF, 128 * 8192))
    a.label("AT_NEXT_DONE")
    a("s_waitcnt vmcnt(0)")
    a("s_barrier")
    a("s_cmp_eq_u32 s%d, 0" % A_HASNEXT)
    a("s_cbranch_scc1 AT_NODMA")
    for j in range(8):
        attn_dma_issue(a, j)
    a.label("AT_NODMA")
    q = LdsQueue(a)
    kr = {}
    for s in range(8):
        a("ds_read_b128 v[%d:%d], v%d" % (FK + 4 * s, FK + 4 * s + 3, VK + s))
        kr[(0, s)] = q.issue()
    for kb in range(2):
        for s in range(8):
            q.need(kr[(kb, s)])
            acc = SA + 16 * kb
            a("v_mfma_f32_32x32x16_bf16 v[%d:%d], v[%d:%d], v[%d:%d], %s" % (
                acc, acc + 15, FK + 4 * s, FK + 4 * s + 3, FQ + 4 * s, FQ + 4 * s + 3,
                "0" if s == 0 else "v[%d:%d]" % (acc, acc + 15)))
            if kb == 0:
                a("ds_read_b128 v[%d:%d], v%d offset:8192" % (FK + 4 * s, FK + 4 * s + 3, VK + s))
                kr[(1, s)] = q.issue()
    vr = {}

    def vread(ks, db):
        f = ks * 4 + db
        sl = FV + 4 * (f % 8)
        a("ds_read_b64_tr_b16 v[%d:%d], v%d offset:%d" % (sl, sl + 1, VV + db, ks * 4096))
        q.issue()
        a("ds_read_b64_tr_b16 v[%d:%d], v%d offset:%d" % (sl + 2, sl + 3, VV + db, ks * 4096 + 2048))
        vr[(ks, db)] = q.issue()
    for ks in range(2):
        for db in range(4):
            vread(ks, db)
    a.mfma_gap(12)
    a("s_cmp_lt_u32 s%d, s%d" % (A_IT, A_QB))
    a("s_cbranch_scc1 AT_NOMASK")
    for kb in range(2):
        for r in range(16):
            cst = 32 * kb + 8 * (r >> 2) + (r & 3)
            a("v_cmp_gt_i32 vcc, %d, v%d" % (cst, VTHR))
            a("s_nop 1")
            a("v_cndmask_b32 v%d, v%d, v%d, vcc" % (SA + 16 * kb + r, SA + 16 * kb + r, VX))
    a.label("AT_NOMASK")
    for kb in range(2):
        b = SA + 16 * kb
        t = T + kb
        a("v_max3_f32 v%d, v%d, v%d, v%d" % (t, b, b + 1, b + 2))
        for r in range(3, 15, 2):
            a("v_max3_f32 v%d, v%d, v%d, v%d" % (t, t, b + r, b + r + 1))
        a("v_max_f32 v%d, v%d, v%d" % (t, t, b + 15))
    a("v_max_f32 v%d, v%d, v%d" % (T, T, T + 1))
    a("v_mov_b32 v%d, v%d" % (T + 1, T))
    a("s_nop 1")
    a("v_permlane32_swap_b32 v%d, v%d" % (T, T + 1))
    a("v_max3_f32 v%d, v%d, v%d, v%d" % (T + 2, T, T + 1, VM))
    a("v_sub_f32 v%d, v%d, v%d" % (T + 3, VM, T + 2))
    a("v_mul_f32 v%d, s%d, v%d" % (T + 3, A_C, T + 3))
    a("v_exp_f32 v%d, v%d" % (T + 3, T + 3))
    a("v_mul_f32 v%d, s%d, v%d" % (T + 4, A_C, T + 2))
    a("v_mov_b32 v%d, v%d" % (VM, T + 2))
    for r in range(32):
        a("v_fma_f32 v%d, v%d, s%d, -v%d" % (SA + r, SA + r, A_C, T + 4))
    for r in range(32):
        a("v_exp_f32 v%d, v%d" % (SA + r, SA + r))
    for k4 in range(4):
        a("v_add_f32 v%d, v%d, v%d" % (T + 5 + k4, SA + k4, SA + 4 + k4))
    for r in range(8, 32):
        a("v_add_f32 v%d, v%d, v%d" % (T + 5 + (r & 3), T + 5 + (r & 3), SA + r))
    a("v_add_f32 v%d, v%d, v%d" % (T + 5, T + 5, T + 6))
    a("v_add_f32 v%d, v%d, v%d" % (T + 7, T + 7, T + 8))
    a("v_add_f32 v%d, v%d, v%d" % (T + 5, T + 5, T + 7))
    a("v_fma_f32 v%d, v%d, v%d, v%d" % (VL, VL, T + 3, T + 5))
    for ks in range(4):
        kb, c2 = ks >> 1, ks & 1
        b = SA + 16 * kb + 8 * c2
        for d2 in range(4):
            a("v_cvt_pk_bf16_f32 v%d, v%d, v%d" % (PF + 4 * ks + d2, b + 2 * d2, b + 2 * d2 + 1))
    a("v_cmp_neq_f32 vcc, 1.0, v%d" % (T + 3))
    a("s_nop 4")
    a("s_cbranch_vccz AT_NORESC")
    for r in range(64):
        a("v_mul_f32 v%d, v%d, v%d" % (OA + r, T + 3, OA + r))
    a.label("AT_NORESC")
    a("s_nop 1")
    for ks in range(4):
        for db in range(4):
            q.need(vr[(ks, db)])
            f = ks * 4 + db
            sl = FV + 4 * (f % 8)
            acc = OA + 16 * db
            a("v_mfma_f32_32x32x16_bf16 v[%d:%d], v[%d:%d], v[%d:%d], v[%d:%d]" % (
                acc, acc + 15, sl, sl + 3, PF + 4 * ks, PF + 4 * ks + 3, acc, acc + 15))
            if ks < 2:
                vread(ks + 2, db)
    for r in range(12):
        a("v_xor_b32 v%d, 0x8000, v%d" % (VK + r, VK + r))
    a("s_xor_b32 s%d, s%d, 32768" % (A_STG, A_STG))
    a("s_xor_b32 s%d, s%d, 32768" % (A_PFK, A_PFK))
    a("s_add_u32 s%d, s%d, 1" % (A_IT, A_IT))
    a("s_cmp_le_u32 s%d, s%d" % (A_IT, A_QB))
    a("s_cbranch_scc1 AT_ITER")

    a.c("merge: stage used by the last iteration = A_STG ^ 32768 (already toggled)")
    a("v_mov_b32 v%d, v%d" % (T, VL))
    a("s_nop 1")
    a("v_permlane32_swap_b32 v%d, v%d" % (VL, T))
    a("v_add_f32 v%d, v%d, v%d" % (VL, VL, T))
    a("s_barrier")
    a("s_xor_b32 s%d, s%d, 32768" % (A_T0, A_STG))
    a("s_lshr_b32 s%d, s%d, 1" % (A_T1, A_WQ))
    a("s_lshl_b32 s%d, s%d, 16" % (A_T1, A_T1))
    a("s_add_u32 s%d, s%d, s%d" % (A_T0, A_T0, A_T1))
    a("s_and_b32 s%d, s%d, 1" % (A_T1, A_WQ))
    a("s_lshl_b32 s%d, s%d, 14" % (A_T1, A_T1))
    a("s_add_u32 s%d, s%d, s%d" % (A_T0, A_T0, A_T1))
    a("v_lshlrev_b32 v%d, 4, v1" % T)
    a("v_add_u32 v%d, s%d, v%d" % (T, A_T0, T))
    a("s_lshl_b32 s%d, s%d, 9" % (A_T1, A_WQ))
    a("s_add_u32 s%d, s%d, %d" % (A_T1, A_T1, AT_LDS_ML))
    a("v_lshlrev_b32 v%d, 3, v1" % (T + 1))
    a("v_add_u32 v%d, s%d, v%d" % (T + 1, A_T1, T + 1))
    a("s_cmp_eq_u32 s%d, 0" % A_HF)
    a("s_cbranch_scc1 AT_MERGE_WAIT")
    a.mfma_gap(12)
    for g in range(16):
        a("ds_write_b128 v%d, v[%d:%d] offset:%d" % (T, OA + 4 * g, OA + 4 * g + 3, g * 1024))
    a("v_mov_b32 v%d, v%d" % (VX + 6, VM))
    a("v_mov_b32 v%d, v%d" % (VX + 7, VL))
    a("ds_write_b64 v%d, v[%d:%d]" % (T + 1, VX + 6, VX + 7))
    a("s_waitcnt lgkmcnt(0)")
    a.label("AT_MERGE_WAIT")
    a("s_barrier")
    a("s_cmp_eq_u32 s%d, 0" % A_HF)
    a("s_cbranch_scc0 AT_MERGE_DONE")
    PO = FV
    for g in range(16):
        a("ds_read_b128 v[%d:%d], v%d offset:%d" % (PO + 4 * g, PO + 4 * g + 3, T, g * 1024))
    a("ds_read_b64 v[%d:%d], v%d" % (VX + 6, VX + 7, T + 1))
    a("s_waitcnt lgkmcnt(0)")
    a("v_mov_b32 v%d, v%d" % (T + 2, VX + 6))
    a("v_mov_b32 v%d, v%d" % (T + 3, VX + 7))
    a("v_max_f32 v%d, v%d, v%d" % (T + 4, VM, T + 2))
    a("v_sub_f32 v%d, v%d, v%d" % (T + 5, VM, T + 4))
    a("v_sub_f32 v%d, v%d, v%d" % (T + 6, T + 2, T + 4))
    a("v_mul_f32 v%d, s%d, v%d" % (T + 5, A_C, T + 5))
    a("v_mul_f32 v%d, s%d, v%d" % (T + 6, A_C, T + 6))
    a("v_exp_f32 v%d, v%d" % (T + 5, T + 5))
    a("v_exp_f32 v%d, v%d" % (T + 6, T + 6))
    a("s_nop 0")
    a("v_mul_f32 v%d, v%d, v%d" % (T + 7, VL, T + 5))
    a("v_fma_f32 v%d, v%d, v%d, v%d" % (T + 7, T + 3, T + 6, T + 7))
    a("v_rcp_f32 v%d, v%d" % (T + 7, T + 7))
    a("s_nop 0")
    a("v_mul_f32 v%d, v%d, v%d" % (T + 5, T + 5, T + 7))
    a("v_mul_f32 v%d, v%d, v%d" % (T + 6, T + 6, T + 7))
    a.mfma_gap(12)
    for r in range(64):
        a("v_mul_f32 v%d, v%d, v%d" % (OA + r, OA + r, T + 5))
    for r in range(64):
        a("v_fma_f32 v%d, v%d, v%d, v%d" % (OA + r, PO + r, T + 6, OA + r))
    RS = 272
    a("v_and_b32 v%d, 31, v1" % (T + 8))
    a("v_mul_u32_u24 v%d, %d, v%d" % (T + 8, RS, T + 8))
    a("v_lshrrev_b32 v%d, 5, v1" % (T + 9))
    a("v_lshl_add_u32 v%d, v%d, 3, v%d" % (T + 8, T + 9, T + 8))
    a("v_add_u32 v%d, s%d, v%d" % (T + 8, A_T0, T + 8))
    a("v_lshrrev_b32 v%d, 4, v1" % (T + 9))
    a("v_and_b32 v%d, 15, v1" % (T + 10))
    a("v_mul_u32_u24 v%d, %d, v%d" % (T + 11, RS, T + 9))
    a("v_lshl_add_u32 v%d, v%d, 4, v%d" % (T + 11, T + 10, T + 11))
    a("v_add_u32 v%d, s%d, v%d" % (T + 11, A_T0, T + 11))
    a("v_mul_u32_u24 v%d, %d, v%d" % (T + 9, YSB, T + 9))
    a("v_lshl_add_u32 v%d, v%d, 4, v%d" % (T + 9, T + 10, T + 9))
    k = 0
    for db in range(4):
        for qd in range(4):
            r0 = OA + 16 * db + 4 * qd
            tp = VX + 2 + 2 * (k & 1)
            a("v_cvt_pk_bf16_f32 v%d, v%d, v%d" % (tp, r0, r0 + 1))
            a("v_cvt_pk_bf16_f32 v%d, v%d, v%d" % (tp + 1, r0 + 2, r0 + 3))
            a("ds_write_b64 v%d, v[%d:%d] offset:%d" % (T + 8, tp, tp + 1, db * 64 + qd * 16))
            k += 1
    a("s_waitcnt lgkmcnt(0)")
    a("s_lshl_b32 s%d, s%d, 7" % (A_T1, A_QB))
    a("s_lshl_b32 s%d, s%d, 5" % (A_T2, A_WQ))
    a("s_add_u32 s%d, s%d, s%d" % (A_T1, A_T1, A_T2))
    a("s_mul_i32 s%d, s%d, %d" % (A_T1, A_T1, YSB))
    a("s_lshl_b32 s%d, s%d, 8" % (A_T2, A_HD))
    a("s_add_u32 s%d, s%d, s%d" % (A_T1, A_T1, A_T2))
    for j in range(8):
        d = FV + 4 * j
        a("ds_read_b128 v[%d:%d], v%d offset:%d" % (d, d + 3, T + 11, j * 4 * RS))
    for j in range(8):
        d = FV + 4 * j
        a("s_waitcnt lgkmcnt(%d)" % (7 - j))
        a("buffer_store_dwordx4 v[%d:%d], v%d, s[%d:%d], s%d offen" % (d, d + 3, T + 9, ASRD_Y, ASRD_Y + 3, A_T1))
        a("s_add_u32 s%d, s%d, %d" % (A_T1, A_T1, 4 * YSB))
    a.label("AT_MERGE_DONE")
    a("s_add_u32 s%d, s%d, 1" % (A_PHASE, A_PHASE))
    a("s_cmp_lt_u32 s%d, 2" % A_PHASE)
    a("s_cbranch_scc1 AT_QBLOCK")
    a.label("AT_EXIT")
    a("s_endpgm")
    return name, 256, AT_LDS, 256


GC_SPLIT = 4
GC_STAGES = KC // 32
GC_PER = (GC_STAGES + GC_SPLIT - 1) // GC_SPLIT
S_PFG = 49
SZ_P = GC_SPLIT * S * M * 4


def gen_gemm_c(a):
    name = "gemmc_kernel"
    c = GemmCfg(2)
    kernel_header(a, name)
    NWG = 256
    a("s_cmp_ge_u32 s2, %d" % NWG)
    a("s_cbranch_scc1 GC_EXIT")
    a("s_and_b32 s%d, s2, 7" % S_T0)
    a("s_lshr_b32 s%d, s2, 3" % S_T1)
    a("s_lshl_b32 s%d, s%d, 1" % (S_MT, S_T0))
    a("s_and_b32 s%d, s%d, 1" % (S_T0, S_T1))
    a("s_add_u32 s%d, s%d, s%d" % (S_MT, S_MT, S_T0))
    a("s_lshr_b32 s%d, s%d, 1" % (S_NT, S_T1))
    a("s_and_b32 s%d, s%d, 3" % (S_NT, S_NT))
    a("s_lshr_b32 s%d, s%d, 3" % (S_FLAG, S_T1))
    P = S_P
    a("s_load_dwordx2 s[%d:%d], s[0:1], %d" % (P, P + 1, KA_WO))
    a("s_load_dwordx2 s[%d:%d], s[0:1], %d" % (P + 2, P + 3, KA_W2))
    a("s_load_dwordx2 s[%d:%d], s[0:1], %d" % (P + 4, P + 5, KA_WS))
    a("v_lshrrev_b32 v1, 6, v0")
    a("s_nop 0")
    a("v_readfirstlane_b32 s%d, v1" % S_W)
    a("s_nop 3")
    a("s_lshr_b32 s%d, s%d, 1" % (S_WN, S_W))
    a("s_and_b32 s%d, s%d, 1" % (S_WM, S_W))
    a("s_waitcnt lgkmcnt(0)")
    a("s_mov_b32 s%d, %d" % (S_XSTR, YSB))
    a("s_mov_b32 s%d, 1024" % S_WSTR)
    add64(a, P + 6, P + 4, WS_Y)
    srd(a, SRD_X, P + 6, SZ_Y)
    add64(a, P + 6, P + 4, WS_P)
    srd(a, SRD_O, P + 6, SZ_P)
    a("s_mul_i32 s%d, s%d, %d" % (S_PFG, S_FLAG, GC_PER))
    a("s_mov_b32 s%d, %d" % (S_NST, GC_PER))
    a("s_cmp_eq_u32 s%d, %d" % (S_FLAG, GC_SPLIT - 1))
    a("s_cselect_b32 s%d, %d, s%d" % (S_NST, GC_STAGES - (GC_SPLIT - 1) * GC_PER, S_NST))
    a("s_cmp_ge_u32 s%d, 128" % S_PFG)
    a("s_cbranch_scc1 GC_W2")
    srd(a, SRD_W, P, HD * M * 2)
    a("s_mov_b32 s%d, s%d" % (S_T1, S_PFG))
    a("s_branch GC_WSET")
    a.label("GC_W2")
    srd(a, SRD_W, P + 2, F * M * 2)
    a("s_sub_u32 s%d, s%d, 128" % (S_T1, S_PFG))
    a.label("GC_WSET")
    a("s_lshl_b32 s%d, s%d, 15" % (S_T1, S_T1))
    a("s_lshl_b32 s%d, s%d, 8" % (S_T0, S_NT))
    a("s_add_u32 s%d, s%d, s%d" % (S_T1, S_T1, S_T0))
    for j in range(c.NWPW):
        a("s_add_u32 s%d, s%d, %d" % (S_T0, S_W, 4 * j))
        a("s_mul_i32 s%d, s%d, %d" % (S_T0, S_T0, c.RPI * 1024))
        a("s_add_u32 s%d, s%d, s%d" % (S_WOFF + j, S_T0, S_T1))
    a("s_mov_b32 s%d, %d" % (S_WINC, 32 * 1024))
    for j in range(c.NXPW):
        a("s_lshl_b32 s%d, s%d, 7" % (S_T0, S_MT))
        a("s_lshl_b32 s%d, s%d, 5" % (S_T1, S_W))
        a("s_add_u32 s%d, s%d, s%d" % (S_T0, S_T0, S_T1))
        a("s_add_u32 s%d, s%d, %d" % (S_T0, S_T0, 16 * j))
        a("s_mul_i32 s%d, s%d, s%d" % (S_XOFF + j, S_T0, S_XSTR))
        a("s_lshl_b32 s%d, s%d, 6" % (S_T0, S_PFG))
        a("s_add_u32 s%d, s%d, s%d" % (S_XOFF + j, S_XOFF + j, S_T0))
    gemm_lane_setup(a, c)

    hook_n = [0]

    def hook():
        hook_n[0] += 1
        lab = "GC_NOSW_%d" % hook_n[0]
        a("s_add_u32 s%d, s%d, 1" % (S_PFG, S_PFG))
        a("s_cmp_eq_u32 s%d, 128" % S_PFG)
        a("s_cbranch_scc0 %s" % lab)
        srd(a, SRD_W, P + 2, F * M * 2)
        for j in range(c.NWPW):
            a("s_sub_u32 s%d, s%d, %d" % (S_WOFF + j, S_WOFF + j, 128 * 32 * 1024))
        a.label(lab)

    gemm_mainloop(a, c, "gc", hook)
    a("s_lshl_b32 s%d, s%d, 22" % (S_T0, S_FLAG))
    a("s_lshl_b32 s%d, s%d, 2" % (S_T1, S_MT))
    a("s_add_u32 s%d, s%d, s%d" % (S_T1, S_T1, S_NT))
    a("s_lshl_b32 s%d, s%d, 16" % (S_T1, S_T1))
    a("s_add_u32 s%d, s%d, s%d" % (S_T0, S_T0, S_T1))
    a("s_lshl_b32 s%d, s%d, 14" % (S_T1, S_W))
    a("s_add_u32 s%d, s%d, s%d" % (S_T0, S_T0, S_T1))
    a("v_lshlrev_b32 v%d, 4, v1" % c.V_T)
    for blk in range(4):
        for qd in range(4):
            r = c.ACC + blk * 16 + qd * 4
            a("buffer_store_dwordx4 v[%d:%d], v%d, s[%d:%d], s%d offen offset:%d" % (
                r, r + 3, c.V_T, SRD_O, SRD_O + 3, S_T0, ((blk * 4 + qd) * 1024) % 4096))
            if (blk * 4 + qd) % 4 == 3:
                a("s_add_u32 s%d, s%d, 4096" % (S_T0, S_T0))
    a.label("GC_EXIT")
    a("s_endpgm")
    return name, c.ACC + c.NACC + 8, c.NSLOT * c.SLOT, NWG


def gen_reduce(a):
    name = "reduce_kernel"
    kernel_header(a, name)
    NWG = 1024
    a("s_cmp_ge_u32 s2, %d" % NWG)
    a("s_cbranch_scc1 RD_EXIT")
    a("s_load_dwordx2 s[4:5], s[0:1], %d" % KA_X)
    a("s_load_dwordx2 s[6:7], s[0:1], %d" % KA_B2)
    a("s_load_dwordx2 s[24:25], s[0:1], %d" % KA_OUT)
    a("s_load_dwordx2 s[26:27], s[0:1], %d" % KA_WS)
    a("s_lshl_b32 s3, s2, 8")
    a("v_add_u32 v1, s3, v0")
    a("v_lshlrev_b32 v2, 4, v1")
    a("v_and_b32 v3, 63, v1")
    a("v_bfe_u32 v4, v1, 6, 2")
    a("v_bfe_u32 v5, v1, 8, 2")
    a("v_bfe_u32 v6, v1, 10, 2")
    a("v_lshrrev_b32 v7, 12, v1")
    a("v_lshrrev_b32 v8, 2, v7")
    a("v_lshlrev_b32 v8, 7, v8")
    a("v_and_b32 v9, 1, v6")
    a("v_lshl_add_u32 v8, v9, 6, v8")
    a("v_and_b32 v9, 1, v5")
    a("v_lshl_add_u32 v8, v9, 5, v8")
    a("v_and_b32 v9, 31, v3")
    a("v_add_u32 v8, v8, v9")
    a("v_and_b32 v9, 3, v7")
    a("v_lshlrev_b32 v9, 7, v9")
    a("v_lshrrev_b32 v10, 1, v6")
    a("v_lshl_add_u32 v9, v10, 6, v9")
    a("v_lshrrev_b32 v10, 1, v5")
    a("v_lshl_add_u32 v9, v10, 5, v9")
    a("v_lshl_add_u32 v9, v4, 3, v9")
    a("v_lshrrev_b32 v10, 5, v3")
    a("v_lshl_add_u32 v9, v10, 2, v9")
    a("v_lshl_add_u32 v10, v8, 9, v9")
    a("v_lshlrev_b32 v10, 1, v10")
    a("v_lshlrev_b32 v11, 1, v9")
    a("s_waitcnt lgkmcnt(0)")
    srd(a, 8, 4, S * M * 2)
    srd(a, 12, 6, M * 2)
    srd(a, 16, 24, S * M * 2)
    add64(a, 26, 26, WS_P)
    srd(a, 20, 26, SZ_P)
    for sp in range(GC_SPLIT):
        a("s_mov_b32 s28, %d" % (sp * S * M * 4))
        a("buffer_load_dwordx4 v[%d:%d], v2, s[20:23], s28 offen" % (12 + 4 * sp, 15 + 4 * sp))
    a("buffer_load_dwordx2 v[28:29], v10, s[8:11], 0 offen")
    a("buffer_load_dwordx2 v[30:31], v11, s[12:15], 0 offen")
    a("s_waitcnt vmcnt(0)")
    for e in range(4):
        a("v_add_f32 v%d, v%d, v%d" % (12 + e, 12 + e, 16 + e))
        a("v_add_f32 v%d, v%d, v%d" % (20 + e, 20 + e, 24 + e))
    for e in range(4):
        a("v_add_f32 v%d, v%d, v%d" % (12 + e, 12 + e, 20 + e))
    a("v_lshlrev_b32 v16, 16, v28")
    a("v_and_b32 v17, 0xffff0000, v28")
    a("v_lshlrev_b32 v18, 16, v29")
    a("v_and_b32 v19, 0xffff0000, v29")
    a("v_lshlrev_b32 v20, 16, v30")
    a("v_and_b32 v21, 0xffff0000, v30")
    a("v_lshlrev_b32 v22, 16, v31")
    a("v_and_b32 v23, 0xffff0000, v31")
    for e in range(4):
        a("v_add_f32 v%d, v%d, v%d" % (12 + e, 12 + e, 20 + e))
    for e in range(4):
        a("v_add_f32 v%d, v%d, v%d" % (12 + e, 12 + e, 16 + e))
    a("v_cvt_pk_bf16_f32 v12, v12, v13")
    a("v_cvt_pk_bf16_f32 v13, v14, v15")
    a("buffer_store_dwordx2 v[12:13], v10, s[16:19], 0 offen")
    a.label("RD_EXIT")
    a("s_endpgm")
    return name, 32, NWG


def build(out_path):
    a = Asm()
    descs = []
    launches = []
    n, v = gen_ln(a)
    descs.append(kernel_desc(n, v))
    launches.append("; @launch kernel=%s grid=(512,1,1) block=(256,1,1) lds=0" % n)
    n, v, lds, nwg = gen_gemm_a(a)
    descs.append(kernel_desc(n, v))
    launches.append("; @launch kernel=%s grid=(%d,1,1) block=(256,1,1) lds=%d" % (n, nwg, lds))
    n, v, lds, nwg = gen_attn(a)
    descs.append(kernel_desc(n, v))
    launches.append("; @launch kernel=%s grid=(%d,1,1) block=(512,1,1) lds=%d" % (n, nwg, lds))
    n, v, lds, nwg = gen_gemm_c(a)
    descs.append(kernel_desc(n, v))
    launches.append("; @launch kernel=%s grid=(%d,1,1) block=(256,1,1) lds=%d" % (n, nwg, lds))
    n, v, nwg = gen_reduce(a)
    descs.append(kernel_desc(n, v))
    launches.append("; @launch kernel=%s grid=(%d,1,1) block=(256,1,1) lds=0" % (n, nwg))
    hdr = open("parallel_sum__compressed_kv_cla__dense_activation_gelu__prompt.s.ref").read()
    cmt = [ln for ln in hdr.splitlines() if ln.startswith(";") and "@launch" not in ln and "Override" not in ln and "grid=ceil" not in ln]
    txt = "\n".join(cmt) + "\n" + "\n".join(launches) + "\n"
    txt += '.amdgcn_target "amdgcn-amd-amdhsa--gfx950"\n.text\n'
    txt += a.text()
    txt += '.section .rodata,"a"\n' + "".join(descs)
    open(out_path, "w").write(txt)


if __name__ == "__main__":
    build(sys.argv[1] if len(sys.argv) > 1 else "k.s")
```

```python
import struct


def f32bits(x):
    return struct.unpack("<I", struct.pack("<f", x))[0]


import re as _re

_VR = _re.compile(r"v\[(\d+):(\d+)\]|v(\d+)")
_TRANS = ("v_exp_f32", "v_log_f32", "v_rcp_f32", "v_rsq_f32", "v_sqrt_f32", "v_sin_f32", "v_cos_f32")


def _vregs(tok):
    m = _VR.fullmatch(tok.strip().lstrip("-").replace("abs(", "").rstrip(")"))
    if not m:
        return set()
    if m.group(1) is not None:
        return set(range(int(m.group(1)), int(m.group(2)) + 1))
    return {int(m.group(3))}


class Asm:
    def __init__(self):
        self.lines = []
        self._uid = 0
        self.idx = 0
        self.since_mfma = 1000
        self.mfma_w = {}
        self.mfma_c = {}
        self.valu_w = {}
        self.trans_w = {}
        self.auto = True

    def _pad_to(self, need_idx):
        n = need_idx - self.idx
        while n > 0:
            k = min(n, 16)
            self.lines.append("    s_nop %d" % (k - 1))
            self.idx += k
            self.since_mfma += k
            n -= k

    def _emit(self, ln):
        op = ln.split()[0]
        rest = ln[len(op):]
        ops = [t.strip() for t in rest.split(",")] if rest.strip() else []
        ops = [o.split()[0] if o else o for o in ops]
        is_mfma = op.startswith("v_mfma")
        is_valu = op.startswith("v_") and not is_mfma
        need = 0
        if self.auto:
            if is_mfma:
                d, a_, b_, c_ = (_vregs(ops[0]), _vregs(ops[1]), _vregs(ops[2]), _vregs(ops[3]) if len(ops) > 3 else set())
                for r in a_ | b_ | c_:
                    if r in self.valu_w:
                        need = max(need, self.valu_w[r] + 3)
                for r in a_ | b_:
                    if r in self.mfma_w:
                        need = max(need, self.mfma_w[r] + 13)
                for r in c_:
                    if r in self.mfma_w and not (c_ == d):
                        need = max(need, self.mfma_w[r] + 11)
            elif is_valu or op.startswith("ds_") or op.startswith("buffer_") or op.startswith("global_"):
                if is_valu:
                    dst = _vregs(ops[0]) if ops else set()
                    srcs = set()
                    for o in ops[1:]:
                        srcs |= _vregs(o)
                    if op.startswith("v_cmp") or op.startswith("v_readfirstlane") or op.startswith("v_readlane"):
                        dst = set()
                        srcs = set()
                        for o in ops[1:]:
                            srcs |= _vregs(o)
                    if op.startswith("v_permlane"):
                        srcs |= dst
                elif op.startswith("ds_read"):
                    dst = _vregs(ops[0])
                    srcs = _vregs(ops[1]) if len(ops) > 1 else set()
                elif op.startswith("ds_write"):
                    dst = set()
                    srcs = set()
                    for o in ops:
                        srcs |= _vregs(o)
                else:
                    dst = set()
                    srcs = set()
                    for o in ops:
                        srcs |= _vregs(o)
                    if "load" in op and " lds" not in ln:
                        dst = _vregs(ops[0])
                for r in srcs | dst:
                    if r in self.mfma_w:
                        need = max(need, self.mfma_w[r] + 13)
                for r in dst:
                    if r in self.mfma_c:
                        need = max(need, self.mfma_c[r] + 8)
                if is_valu:
                    for r in srcs:
                        if r in self.trans_w:
                            need = max(need, self.trans_w[r] + 2)
                    if op.startswith("v_permlane") or "dpp" in ln:
                        for r in srcs:
                            if r in self.valu_w:
                                need = max(need, self.valu_w[r] + 3)
                    if op.startswith("v_readfirstlane") or op.startswith("v_readlane"):
                        for r in srcs:
                            if r in self.valu_w:
                                need = max(need, self.valu_w[r] + 2)
            if need > self.idx:
                self._pad_to(need)
        self.lines.append("    " + ln)
        if is_mfma:
            for r in _vregs(ops[0]):
                self.mfma_w[r] = self.idx
                self.valu_w.pop(r, None)
            if len(ops) > 3:
                for r in _vregs(ops[3]):
                    self.mfma_c[r] = self.idx
            self.since_mfma = 0
        else:
            if is_valu and ops and not (op.startswith("v_cmp") or op.startswith("v_readfirstlane") or op.startswith("v_readlane")):
                regs = _vregs(ops[0])
                if op.startswith("v_permlane"):
                    regs = regs | _vregs(ops[1])
                for r in regs:
                    self.valu_w[r] = self.idx
                    self.mfma_w.pop(r, None)
                    if op in _TRANS:
                        self.trans_w[r] = self.idx
                    else:
                        self.trans_w.pop(r, None)
            self.since_mfma += 1
        if op == "s_nop":
            k = int(ops[0]) if ops else 0
            self.idx += k
            self.since_mfma += k
        self.idx += 1

    def __call__(self, s=""):
        for ln in s.strip("\n").split("\n"):
            ln = ln.strip()
            if ln:
                self._emit(ln)

    def mfma_gap(self, n):
        need = n - self.since_mfma
        if need > 0:
            self._pad_to(self.idx + need)

    def c(self, s):
        self.lines.append("    ; " + s)

    def label(self, name):
        self.lines.append(name + ":")

    def uid(self, base):
        self._uid += 1
        return "%s_%d" % (base, self._uid)

    def raw(self, s):
        self.lines.append(s)

    def text(self):
        return "\n".join(self.lines) + "\n"


def kernel_header(a, name):
    a.raw(".globl %s" % name)
    a.raw(".p2align 8")
    a.raw(".type %s,@function" % name)
    a.label(name)


def kernel_desc(name, vgpr, sgpr=102, accum=None, extra=""):
    if accum is None:
        accum = (vgpr + 3) // 4 * 4
    return """.p2align 6
.amdhsa_kernel %s
  .amdhsa_next_free_vgpr %d
  .amdhsa_next_free_sgpr %d
  .amdhsa_accum_offset %d
  .amdhsa_group_segment_fixed_size 0
  .amdhsa_kernarg_size 112
  .amdhsa_user_sgpr_count 2
  .amdhsa_user_sgpr_kernarg_segment_ptr 1
  .amdhsa_system_sgpr_workgroup_id_x 1
%s.end_amdhsa_kernel
""" % (name, vgpr, sgpr, accum, extra)


def srd(a, sd, sbase, nbytes):
    a("s_mov_b32 s%d, s%d" % (sd, sbase))
    a("s_mov_b32 s%d, s%d" % (sd + 1, sbase + 1))
    a("s_mov_b32 s%d, %d" % (sd + 2, nbytes))
    a("s_mov_b32 s%d, 0x00020000" % (sd + 3))


def add64(a, sd, sbase, off):
    a("s_add_u32 s%d, s%d, %d" % (sd, sbase, off))
    a("s_addc_u32 s%d, s%d, 0" % (sd + 1, sbase + 1))
```

```python
import sys, math, os
sys.path.insert(0, "dev")
from asmlib import *

S, M, H, D, F = 2048, 512, 32, 128, 1376
HD = H * D
KC = HD + F
TB = 128
GR = TB * 16
YCH = 704

KA_X, KA_CKV, KA_WQ, KA_WUK, KA_WUV, KA_WO, KA_BX, KA_W1, KA_B1, KA_W2, KA_B2, KA_OUT, KA_DBG, KA_WS = \
    [8 * i for i in range(14)]

MBy = 1 << 20
WS_XN = 0
WS_CK = 2 * MBy
WS_Q = 4 * MBy
WS_K = 20 * MBy
WS_V = 36 * MBy
WS_Y = 52 * MBy
WS_P = 80 * MBy
BS_X = 64 * GR
BS_Q = 512 * GR
BS_Y = YCH * GR
SZ_XN = 16 * BS_X
SZ_QKV = 16 * BS_Q
SZ_Y = 16 * BS_Y
LOG2E = 1.4426950408889634

EXP = os.environ.get("EXP", "")


class LdsQueue:
    def __init__(self, a):
        self.a = a
        self.n_issued = 0
        self.done_upto = -1

    def issue(self):
        self.n_issued += 1
        return self.n_issued - 1

    def need(self, idx):
        if idx <= self.done_upto:
            return
        n = min(self.n_issued - 1 - idx, 15)
        self.a("s_waitcnt lgkmcnt(%d)" % n)
        self.done_upto = self.n_issued - 1 - n


def gen_ln(a):
    name = "ln_kernel"
    kernel_header(a, name)
    NWG = 1024
    a("s_cmp_ge_u32 s2, %d" % NWG)
    a("s_cbranch_scc1 LN_EXIT")
    a("s_load_dwordx2 s[4:5], s[0:1], %d" % KA_X)
    a("s_load_dwordx2 s[6:7], s[0:1], %d" % KA_WS)
    a("s_load_dwordx2 s[16:17], s[0:1], %d" % KA_CKV)
    a("v_lshrrev_b32 v1, 6, v0")
    a("v_and_b32 v2, 63, v0")
    a("s_and_b32 s3, s2, 511")
    a("s_lshl_b32 s3, s3, 2")
    a("v_add_u32 v1, s3, v1")
    a("v_lshlrev_b32 v3, 10, v1")
    a("v_lshl_add_u32 v3, v2, 4, v3")
    a("v_lshrrev_b32 v20, 7, v1")
    a("v_lshlrev_b32 v20, 17, v20")
    a("v_and_b32 v21, 127, v1")
    a("v_lshl_add_u32 v21, v2, 7, v21")
    a("v_lshl_add_u32 v20, v21, 4, v20")
    a("s_waitcnt lgkmcnt(0)")
    a("s_cmp_ge_u32 s2, 512")
    a("s_cbranch_scc1 LN_COPY")
    srd(a, 8, 4, S * M * 2)
    add64(a, 6, 6, WS_XN)
    srd(a, 12, 6, SZ_XN)
    a("buffer_load_dwordx4 v[4:7], v3, s[8:11], 0 offen")
    a("s_waitcnt vmcnt(0)")
    for d in range(4):
        a("v_lshlrev_b32 v%d, 16, v%d" % (8 + 2 * d, 4 + d))
        a("v_and_b32 v%d, 0xffff0000, v%d" % (9 + 2 * d, 4 + d))

    def tree_sum(dst, regs):
        a("v_add_f32 v%d, v%d, v%d" % (dst, regs[0], regs[1]))
        for r in regs[2:]:
            a("v_add_f32 v%d, v%d, v%d" % (dst, dst, r))

    def wave_reduce(v, sdst):
        for sh in (1, 2, 4, 8):
            a("s_nop 1")
            a("v_add_f32_dpp v%d, v%d, v%d row_shr:%d row_mask:0xf bank_mask:0xf bound_ctrl:0" % (v, v, v, sh))
        a("s_nop 1")
        a("v_add_f32_dpp v%d, v%d, v%d row_bcast:15 row_mask:0xa bank_mask:0xf" % (v, v, v))
        a("s_nop 1")
        a("v_add_f32_dpp v%d, v%d, v%d row_bcast:31 row_mask:0xc bank_mask:0xf" % (v, v, v))
        a("s_nop 1")
        a("v_readlane_b32 s%d, v%d, 63" % (sdst, v))
        a("s_nop 3")

    tree_sum(16, list(range(8, 16)))
    wave_reduce(16, 20)
    a("v_mov_b32 v17, s20")
    a("v_mul_f32 v17, 0x3b000000, v17")
    for i in range(8):
        a("v_sub_f32 v%d, v%d, v17" % (24 + i, 8 + i))
    for i in range(8):
        a("v_mul_f32 v%d, v%d, v%d" % (24 + i, 24 + i, 24 + i))
    tree_sum(18, list(range(24, 32)))
    wave_reduce(18, 21)
    a("v_mov_b32 v18, s21")
    a("v_mul_f32 v18, 0x3b000000, v18")

    def bfr(v):
        a("v_cvt_pk_bf16_f32 v%d, v%d, v%d" % (v, v, v))
        a("v_lshlrev_b32 v%d, 16, v%d" % (v, v))
    bfr(17)
    bfr(18)
    a("v_add_f32 v18, 0x3727c5ac, v18")
    bfr(18)
    a("v_sqrt_f32 v18, v18")
    a("s_nop 0")
    bfr(18)
    a("v_rcp_f32 v19, v18")
    for i in range(8):
        a("v_sub_f32 v%d, v%d, v17" % (24 + i, 8 + i))
    for i in range(0, 8, 2):
        a("v_cvt_pk_bf16_f32 v%d, v%d, v%d" % (32 + i // 2, 24 + i, 25 + i))
    for i in range(4):
        a("v_lshlrev_b32 v%d, 16, v%d" % (24 + 2 * i, 32 + i))
        a("v_and_b32 v%d, 0xffff0000, v%d" % (25 + 2 * i, 32 + i))
    for i in range(8):
        a("v_mul_f32 v%d, v%d, v19" % (36 + i, 24 + i))
    for i in range(8):
        a("v_fma_f32 v%d, -v%d, v18, v%d" % (44 + i, 36 + i, 24 + i))
    for i in range(8):
        a("v_fma_f32 v%d, v%d, v19, v%d" % (36 + i, 44 + i, 36 + i))
    for i in range(4):
        a("v_cvt_pk_bf16_f32 v%d, v%d, v%d" % (4 + i, 36 + 2 * i, 37 + 2 * i))
    a("buffer_store_dwordx4 v[4:7], v20, s[12:15], 0 offen")
    a("s_endpgm")
    a.label("LN_COPY")
    srd(a, 8, 16, S * M * 2)
    add64(a, 6, 6, WS_CK)
    srd(a, 12, 6, SZ_XN)
    a("buffer_load_dwordx4 v[4:7], v3, s[8:11], 0 offen")
    a("s_waitcnt vmcnt(0)")
    a("buffer_store_dwordx4 v[4:7], v20, s[12:15], 0 offen")
    a.label("LN_EXIT")
    a("s_endpgm")
    return name, 64, NWG


class GemmCfg:
    def __init__(self, NB):
        self.NB = NB
        self.BN = 2 * 32 * NB
        self.BM = 128
        self.RB = self.BN * 2
        self.WBYTES = 32 * self.RB
        self.XBYTES = 4 * GR
        self.SLOT = self.WBYTES + self.XBYTES
        self.NSLOT = 3
        self.RPI = 1024 // self.RB
        self.NWI = self.WBYTES // 1024
        self.NXI = self.XBYTES // 1024
        self.NWPW = self.NWI // 4
        self.NXPW = self.NXI // 4
        self.ND = self.NWPW + self.NXPW
        self.V_AADDR = 2
        self.V_BADDR = 6
        self.V_DMAW = 8
        self.V_DMAX = 9
        self.V_T = 10
        self.FA = 16
        self.FB = self.FA + 2 * NB * 4
        self.ACC = 64
        self.NACC = NB * 2 * 16
        self.V_EP = self.ACC + self.NACC

    def acc(self, nb, mb):
        return self.ACC + (nb * 2 + mb) * 16

    def fa(self, s, nb):
        return self.FA + (s * self.NB + nb) * 4

    def fb(self, s, mb):
        return self.FB + (s * 2 + mb) * 4


S_W = 3
SRD_X, SRD_W, SRD_O, SRD_B = 8, 12, 16, 20
S_WOFF = 24
S_XOFF = 28
S_STAGE, S_NST, S_CUR, S_PF, S_WINC, S_DELTA, S_T0, S_T1, S_PFW, S_PFX, S_WSTR = 30, 31, 32, 33, 34, 35, 36, 37, 38, 39, 40
S_FLAG, S_MT, S_NT, S_OCH, S_OBS, S_WN, S_WM, S_PFG = 42, 43, 44, 45, 46, 47, 48, 49
S_P = 50


def gemm_lane_setup(a, c):
    T = c.V_T
    a("v_and_b32 v1, 63, v0")
    a("v_lshrrev_b32 v%d, 5, v1" % T)
    a("v_and_b32 v%d, 15, v1" % (T + 1))
    a("v_lshrrev_b32 v%d, 2, v%d" % (T + 2, T + 1))
    a("v_and_b32 v%d, 3, v%d" % (T + 3, T + 1))
    a("v_bfe_u32 v%d, v1, 4, 1" % (T + 4))
    a("v_lshl_add_u32 v%d, v%d, 3, v%d" % (T + 5, T, T + 2))
    a("v_mul_u32_u24 v%d, %d, v%d" % (T + 5, c.RB, T + 5))
    a("v_lshlrev_b32 v%d, 5, v%d" % (T + 4, T + 4))
    a("v_lshl_add_u32 v%d, v%d, 3, v%d" % (T + 4, T + 3, T + 4))
    a("v_add_u32 v%d, v%d, v%d" % (T + 5, T + 5, T + 4))
    a("s_mul_i32 s%d, s%d, %d" % (S_T0, S_WN, c.NB))
    for nb in range(c.NB):
        a("s_add_u32 s%d, s%d, %d" % (S_T1, S_T0, nb))
        a("v_xor_b32 v%d, s%d, v%d" % (c.V_AADDR + nb, S_T1, T + 2))
        a("v_lshl_add_u32 v%d, v%d, 6, v%d" % (c.V_AADDR + nb, c.V_AADDR + nb, T + 5))
    a("v_and_b32 v%d, 31, v1" % (T + 2))
    a("s_lshl_b32 s%d, s%d, 6" % (S_T0, S_WM))
    a("v_add_u32 v%d, s%d, v%d" % (T + 2, S_T0, T + 2))
    a("v_lshlrev_b32 v%d, 4, v%d" % (T + 2, T + 2))
    a("v_lshl_add_u32 v%d, v%d, 11, v%d" % (T + 2, T, T + 2))
    a("v_add_u32 v%d, %d, v%d" % (c.V_BADDR, c.WBYTES, T + 2))
    CR = c.RB // 16
    sh = int(math.log2(CR))
    a("v_lshrrev_b32 v%d, %d, v1" % (T, sh))
    a("v_and_b32 v%d, %d, v1" % (T + 1, CR - 1))
    a("v_lshrrev_b32 v%d, 2, v%d" % (T + 2, T + 1))
    if c.RPI == 2:
        a("s_and_b32 s%d, s%d, 1" % (S_T0, S_W))
        a("s_lshl_b32 s%d, s%d, 1" % (S_T0, S_T0))
        a("v_add_u32 v%d, s%d, v%d" % (T + 3, S_T0, T))
    else:
        a("v_mov_b32 v%d, v%d" % (T + 3, T))
    a("v_xor_b32 v%d, v%d, v%d" % (T + 2, T + 2, T + 3))
    a("v_and_b32 v%d, 3, v%d" % (T + 1, T + 1))
    a("v_lshlrev_b32 v%d, 4, v%d" % (T + 1, T + 1))
    a("v_lshl_add_u32 v%d, v%d, 6, v%d" % (T + 1, T + 2, T + 1))
    a("v_mul_lo_u32 v%d, v%d, s%d" % (T, T, S_WSTR))
    a("v_add_u32 v%d, v%d, v%d" % (c.V_DMAW, T, T + 1))
    a("v_lshlrev_b32 v%d, 4, v1" % c.V_DMAX)


def gemm_dma_piece(a, c, idx):
    if EXP == "nodma":
        return
    if idx < c.NWPW:
        j = idx
        a("s_add_u32 m0, s%d, %d" % (S_PFW, 4096 * j))
        a("s_nop 0")
        a("buffer_load_dwordx4 v%d, s[%d:%d], s%d offen lds" % (c.V_DMAW, SRD_W, SRD_W + 3, S_WOFF + j))
        a("s_add_u32 s%d, s%d, s%d" % (S_WOFF + j, S_WOFF + j, S_WINC))
    else:
        j = idx - c.NWPW
        a("s_add_u32 m0, s%d, %d" % (S_PFX, 1024 * j))
        a("s_nop 0")
        a("buffer_load_dwordx4 v%d, s[%d:%d], s%d offen lds" % (c.V_DMAX, SRD_X, SRD_X + 3, S_XOFF + j))
        a("s_add_u32 s%d, s%d, 8192" % (S_XOFF + j, S_XOFF + j))


def gemm_pf_advance(a, c):
    a("s_add_u32 s%d, s%d, %d" % (S_PF, S_PF, c.SLOT))
    a("s_cmp_eq_u32 s%d, %d" % (S_PF, c.NSLOT * c.SLOT))
    a("s_cselect_b32 s%d, 0, s%d" % (S_PF, S_PF))
    a("s_lshl_b32 s%d, s%d, 10" % (S_T0, S_W))
    a("s_add_u32 s%d, s%d, s%d" % (S_PFW, S_PF, S_T0))
    a("s_lshl_b32 s%d, s%d, 11" % (S_T0, S_W))
    a("s_add_u32 s%d, s%d, s%d" % (S_PFX, S_PF, S_T0))
    a("s_add_u32 s%d, s%d, %d" % (S_PFX, S_PFX, c.WBYTES))


def gemm_stage(a, c, issue, wait_n, hook=None):
    a("s_waitcnt vmcnt(%d)" % wait_n)
    a("s_barrier")
    q = LdsQueue(a)
    ra, rb = {}, {}
    for s in range(2):
        order = [("A", 0), ("B", 0), ("B", 1)] + [("A", nb) for nb in range(1, c.NB)]
        for kind, x in order:
            if EXP == "dmaonly":
                ra[(s, x)] = rb[(s, x)] = -1
                continue
            if kind == "A":
                f = c.fa(s, x)
                off = s * 16 * c.RB
                a("ds_read_b64_tr_b16 v[%d:%d], v%d offset:%d" % (f, f + 1, c.V_AADDR + x, off))
                q.issue()
                a("ds_read_b64_tr_b16 v[%d:%d], v%d offset:%d" % (f + 2, f + 3, c.V_AADDR + x, off + 4 * c.RB))
                ra[(s, x)] = q.issue()
            else:
                f = c.fb(s, x)
                a("ds_read_b128 v[%d:%d], v%d offset:%d" % (f, f + 3, c.V_BADDR, s * 4096 + x * 512))
                rb[(s, x)] = q.issue()
    a("s_add_u32 s%d, s%d, %d" % (S_T0, S_CUR, c.SLOT))
    a("s_cmp_eq_u32 s%d, %d" % (S_T0, c.NSLOT * c.SLOT))
    a("s_cselect_b32 s%d, 0, s%d" % (S_T0, S_T0))
    a("s_sub_u32 s%d, s%d, s%d" % (S_DELTA, S_T0, S_CUR))
    a("s_mov_b32 s%d, s%d" % (S_CUR, S_T0))
    for nb in range(c.NB):
        a("v_add_u32 v%d, s%d, v%d" % (c.V_AADDR + nb, S_DELTA, c.V_AADDR + nb))
    a("v_add_u32 v%d, s%d, v%d" % (c.V_BADDR, S_DELTA, c.V_BADDR))
    nm = 0
    pieces = list(range(c.ND)) if issue else []
    for s in range(2):
        for nb in range(c.NB):
            for mb in range(2):
                q.need(max(ra[(s, nb)], rb[(s, mb)]))
                acc = c.acc(nb, mb)
                if EXP in ("nomfma", "dmaonly"):
                    nm += 1
                    if pieces and nm % 2 == 1:
                        gemm_dma_piece(a, c, pieces.pop(0))
                    continue
                a("v_mfma_f32_32x32x16_bf16 v[%d:%d], v[%d:%d], v[%d:%d], v[%d:%d]" % (
                    acc, acc + 15, c.fa(s, nb), c.fa(s, nb) + 3, c.fb(s, mb), c.fb(s, mb) + 3, acc, acc + 15))
                nm += 1
                if pieces and nm % 2 == 1:
                    gemm_dma_piece(a, c, pieces.pop(0))
    while pieces:
        gemm_dma_piece(a, c, pieces.pop(0))
    if issue:
        gemm_pf_advance(a, c)
    if hook:
        hook()


def gemm_mainloop(a, c, tag, stage_hook=None):
    a("s_mov_b32 s%d, 0" % S_CUR)
    a("s_mov_b32 s%d, %d" % (S_PF, (c.NSLOT - 1) * c.SLOT))
    gemm_pf_advance(a, c)
    for st in range(2):
        for p in range(c.ND):
            gemm_dma_piece(a, c, p)
        gemm_pf_advance(a, c)
        if stage_hook:
            stage_hook()
    for r in range(c.NACC):
        a("v_mov_b32 v%d, 0" % (c.ACC + r))
    a("s_mov_b32 s%d, 0" % S_STAGE)
    a("s_sub_u32 s%d, s%d, 2" % (S_NST, S_NST))
    if EXP == "noloop" and tag == "ga":
        a("s_branch L_ga_done")
    a.label("L_%s_loop" % tag)
    gemm_stage(a, c, True, c.ND, stage_hook)
    a("s_add_u32 s%d, s%d, 1" % (S_STAGE, S_STAGE))
    a("s_cmp_lt_u32 s%d, s%d" % (S_STAGE, S_NST))
    a("s_cbranch_scc1 L_%s_loop" % tag)
    gemm_stage(a, c, False, c.ND)
    gemm_stage(a, c, False, 0)
    if tag == "ga":
        a.label("L_ga_done")
    a("s_waitcnt vmcnt(0)")
    a("s_nop 15")
    a("s_nop 7")


def gemm_store_granule(a, c, gelu):
    NB = c.NB
    T = c.V_T
    EP = c.V_EP
    a("v_and_b32 v%d, 31, v1" % T)
    a("v_lshlrev_b32 v%d, 4, v%d" % (T, T))
    a("v_lshrrev_b32 v%d, 5, v1" % (T + 1))
    a("v_lshl_add_u32 v%d, v%d, 11, v%d" % (T, T + 1, T))
    a("s_mul_i32 s%d, s%d, s%d" % (S_T0, S_MT, S_OBS))
    a("s_mul_i32 s%d, s%d, %d" % (S_T1, S_WN, 4 * NB))
    a("s_add_u32 s%d, s%d, s%d" % (S_T1, S_T1, S_OCH))
    a("s_lshl_b32 s%d, s%d, 11" % (S_T1, S_T1))
    a("s_add_u32 s%d, s%d, s%d" % (S_T0, S_T0, S_T1))
    a("s_lshl_b32 s%d, s%d, 10" % (S_T1, S_WM))
    a("s_add_u32 s%d, s%d, s%d" % (S_T0, S_T0, S_T1))
    if gelu:
        BR = EP + 16
        a("v_lshrrev_b32 v%d, 5, v1" % (T + 2))
        a("v_lshlrev_b32 v%d, 3, v%d" % (T + 2, T + 2))
        a("s_sub_u32 s%d, s%d, 512" % (S_T1, S_OCH))
        a("s_lshl_b32 s%d, s%d, 4" % (S_T1, S_T1))
        a("s_mul_i32 s%d, s%d, %d" % (S_DELTA, S_WN, NB * 64))
        a("s_add_u32 s%d, s%d, s%d" % (S_T1, S_T1, S_DELTA))
        for nb in range(NB):
            for qd in range(4):
                r = BR + (nb * 4 + qd) * 2
                a("buffer_load_dwordx2 v[%d:%d], v%d, s[%d:%d], s%d offen offset:%d" % (
                    r, r + 1, T + 2, SRD_B, SRD_B + 3, S_T1, nb * 64 + qd * 16))
        a("s_mov_b32 s%d, 0x%08x" % (S_DELTA, f32bits(-2.0 * 0.7978845608028654 * LOG2E * 0.044715)))
        a("v_mov_b32 v%d, 0x%08x" % (EP + 15, f32bits(-2.0 * 0.7978845608028654 * LOG2E)))
        a("s_waitcnt vmcnt(0)")
    k = 0
    for nb in range(NB):
        for mb in range(2):
            for qp in range(2):
                dq = EP + 4 + 4 * (k & 1) if True else 0
                for qi in range(2):
                    qd = 2 * qp + qi
                    r0 = c.acc(nb, mb) + 4 * qd
                    if gelu:
                        br = EP + 16 + (nb * 4 + qd) * 2
                        U = EP + 12
                        W0 = EP
                        a("v_lshlrev_b32 v%d, 16, v%d" % (U, br))
                        a("v_and_b32 v%d, 0xffff0000, v%d" % (U + 1, br))
                        a("v_lshlrev_b32 v%d, 16, v%d" % (U + 2, br + 1))
                        a("v_and_b32 v%d, 0xffff0000, v%d" % (W0 + 3, br + 1))
                        a("v_add_f32 v%d, v%d, v%d" % (r0, r0, U))
                        a("v_add_f32 v%d, v%d, v%d" % (r0 + 1, r0 + 1, U + 1))
                        a("v_add_f32 v%d, v%d, v%d" % (r0 + 2, r0 + 2, U + 2))
                        a("v_add_f32 v%d, v%d, v%d" % (r0 + 3, r0 + 3, W0 + 3))
                        for e in range(4):
                            a("v_mul_f32 v%d, v%d, v%d" % (W0 + e, r0 + e, r0 + e))
                        for e in range(4):
                            a("v_fma_f32 v%d, v%d, s%d, v%d" % (W0 + e, W0 + e, S_DELTA, EP + 15))
                        for e in range(4):
                            a("v_mul_f32 v%d, v%d, v%d" % (W0 + e, W0 + e, r0 + e))
                        for e in range(4):
                            a("v_exp_f32 v%d, v%d" % (W0 + e, W0 + e))
                        for e in range(4):
                            a("v_add_f32 v%d, 1.0, v%d" % (W0 + e, W0 + e))
                        for e in range(4):
                            a("v_rcp_f32 v%d, v%d" % (W0 + e, W0 + e))
                        for e in range(4):
                            a("v_mul_f32 v%d, v%d, v%d" % (r0 + e, r0 + e, W0 + e))
                    a("v_cvt_pk_bf16_f32 v%d, v%d, v%d" % (dq + 2 * qi, r0, r0 + 1))
                    a("v_cvt_pk_bf16_f32 v%d, v%d, v%d" % (dq + 2 * qi + 1, r0 + 2, r0 + 3))
                a("s_nop 1")
                a("v_permlane32_swap_b32 v%d, v%d" % (dq, dq + 2))
                a("v_permlane32_swap_b32 v%d, v%d" % (dq + 1, dq + 3))
                off = (nb * 4 + 2 * qp) * 2048 + mb * 512
                a("s_add_u32 s%d, s%d, %d" % (S_T1, S_T0, off))
                if EXP != "nostore":
                    a("buffer_store_dwordx4 v[%d:%d], v%d, s[%d:%d], s%d offen" % (dq, dq + 3, T, SRD_O, SRD_O + 3, S_T1))
                k += 1


def gen_gemm_a(a):
    name = "gemma_kernel"
    c = GemmCfg(4)
    kernel_header(a, name)
    NWG = 8 * 16 * 7
    a("s_cmp_ge_u32 s2, %d" % NWG)
    a("s_cbranch_scc1 GA_EXIT")
    a("s_and_b32 s%d, s2, 7" % S_T0)
    a("s_lshr_b32 s%d, s2, 3" % S_T1)
    a("s_and_b32 s%d, s%d, 15" % (S_MT, S_T1))
    a("s_lshr_b32 s%d, s%d, 4" % (S_T1, S_T1))
    a("s_lshl_b32 s%d, s%d, 3" % (S_T1, S_T1))
    a("s_add_u32 s%d, s%d, s%d" % (S_NT, S_T1, S_T0))
    a("s_cmp_ge_u32 s%d, 54" % S_NT)
    a("s_cbranch_scc1 GA_EXIT")
    P = S_P
    a("s_load_dwordx2 s[%d:%d], s[0:1], %d" % (P + 2, P + 3, KA_WQ))
    a("s_load_dwordx2 s[%d:%d], s[0:1], %d" % (P + 4, P + 5, KA_WUK))
    a("s_load_dwordx2 s[%d:%d], s[0:1], %d" % (P + 6, P + 7, KA_WUV))
    a("s_load_dwordx2 s[%d:%d], s[0:1], %d" % (P + 8, P + 9, KA_W1))
    a("s_load_dwordx2 s[%d:%d], s[0:1], %d" % (P + 10, P + 11, KA_B1))
    a("s_load_dwordx2 s[%d:%d], s[0:1], %d" % (P + 12, P + 13, KA_WS))
    a("v_lshrrev_b32 v1, 6, v0")
    a("s_nop 0")
    a("v_readfirstlane_b32 s%d, v1" % S_W)
    a("s_nop 3")
    a("s_lshr_b32 s%d, s%d, 1" % (S_WN, S_W))
    a("s_and_b32 s%d, s%d, 1" % (S_WM, S_W))
    a("s_waitcnt lgkmcnt(0)")
    WS = P + 12
    srd(a, SRD_B, P + 10, F * 2)
    a("s_cmp_lt_u32 s%d, 6" % S_NT)
    a("s_cbranch_scc1 GA_FFN")
    a("s_sub_u32 s%d, s%d, 6" % (S_T0, S_NT))
    a("s_lshr_b32 s%d, s%d, 4" % (S_T1, S_T0))
    a("s_and_b32 s%d, s%d, 15" % (S_T0, S_T0))
    a("s_lshl_b32 s%d, s%d, 5" % (S_OCH, S_T0))
    a("s_mov_b32 s%d, 0" % S_FLAG)
    a("s_mov_b32 s%d, 8192" % S_WSTR)
    a("s_mov_b32 s%d, %d" % (S_OBS, BS_Q))
    a("s_cmp_eq_u32 s%d, 1" % S_T1)
    a("s_cselect_b32 s%d, s%d, s%d" % (P + 14, P + 4, P + 2))
    a("s_cselect_b32 s%d, s%d, s%d" % (P + 15, P + 5, P + 3))
    a("s_cmp_eq_u32 s%d, 2" % S_T1)
    a("s_cselect_b32 s%d, s%d, s%d" % (P + 14, P + 6, P + 14))
    a("s_cselect_b32 s%d, s%d, s%d" % (P + 15, P + 7, P + 15))
    srd(a, SRD_W, P + 14, M * HD * 2)
    a("s_cmp_eq_u32 s%d, 0" % S_T1)
    a("s_cselect_b32 s%d, %d, %d" % (S_DELTA, WS_XN, WS_CK))
    a("s_add_u32 s%d, s%d, s%d" % (P + 16, WS, S_DELTA))
    a("s_addc_u32 s%d, s%d, 0" % (P + 17, WS + 1))
    srd(a, SRD_X, P + 16, SZ_XN)
    a("s_mul_i32 s%d, s%d, %d" % (S_T1, S_T1, WS_K - WS_Q))
    a("s_add_u32 s%d, s%d, %d" % (S_T1, S_T1, WS_Q))
    a("s_add_u32 s%d, s%d, s%d" % (P + 18, WS, S_T1))
    a("s_addc_u32 s%d, s%d, 0" % (P + 19, WS + 1))
    srd(a, SRD_O, P + 18, SZ_QKV)
    a("s_lshl_b32 s%d, s%d, 9" % (S_T1, S_T0))
    a("s_branch GA_COMMON")
    a.label("GA_FFN")
    a("s_lshl_b32 s%d, s%d, 5" % (S_OCH, S_NT))
    a("s_add_u32 s%d, s%d, 512" % (S_OCH, S_OCH))
    a("s_mov_b32 s%d, 1" % S_FLAG)
    a("s_mov_b32 s%d, %d" % (S_WSTR, F * 2))
    a("s_mov_b32 s%d, %d" % (S_OBS, BS_Y))
    srd(a, SRD_W, P + 8, M * F * 2)
    add64(a, P + 16, WS, WS_XN)
    srd(a, SRD_X, P + 16, SZ_XN)
    add64(a, P + 18, WS, WS_Y)
    srd(a, SRD_O, P + 18, SZ_Y)
    a("s_lshl_b32 s%d, s%d, 9" % (S_T1, S_NT))
    a.label("GA_COMMON")
    for j in range(c.NWPW):
        a("s_add_u32 s%d, s%d, %d" % (S_T0, S_W, 4 * j))
        a("s_mul_i32 s%d, s%d, %d" % (S_T0, S_T0, c.RPI))
        a("s_mul_i32 s%d, s%d, s%d" % (S_T0, S_T0, S_WSTR))
        a("s_add_u32 s%d, s%d, s%d" % (S_WOFF + j, S_T0, S_T1))
    a("s_mul_i32 s%d, s%d, 32" % (S_WINC, S_WSTR))
    for j in range(c.NXPW):
        a("s_mul_i32 s%d, s%d, %d" % (S_T0, S_MT, BS_X))
        a("s_lshl_b32 s%d, s%d, 11" % (S_T1, S_W))
        a("s_add_u32 s%d, s%d, s%d" % (S_T0, S_T0, S_T1))
        a("s_add_u32 s%d, s%d, %d" % (S_XOFF + j, S_T0, 1024 * j))
    gemm_lane_setup(a, c)
    a("s_mov_b32 s%d, %d" % (S_NST, M // 32))
    gemm_mainloop(a, c, "ga")
    a("s_cmp_eq_u32 s%d, 1" % S_FLAG)
    a("s_cbranch_scc1 GA_EP_GELU")
    gemm_store_granule(a, c, False)
    a("s_endpgm")
    a.label("GA_EP_GELU")
    gemm_store_granule(a, c, True)
    a.label("GA_EXIT")
    a("s_endpgm")
    return name, 256, c.NSLOT * c.SLOT, NWG


SCALE_C = (D ** -0.5) * LOG2E
VPAD = 1088
KT_BYTES = 16 * 1024
VT_BYTES = 16 * VPAD
STG_BYTES = KT_BYTES + VT_BYTES
HALF_BYTES = 2 * STG_BYTES
AT_LDS_ML = 2 * HALF_BYTES
AT_LDS = AT_LDS_ML + 2048

A_W, A_HF, A_WQ, A_HD, A_P, A_QB, A_IT, A_PHASE = 3, 4, 5, 6, 7, 24, 25, 26
ASRD_Q, ASRD_K, ASRD_V, ASRD_Y = 8, 12, 16, 20
A_STG, A_PFK, A_KOFF, A_C, A_T0, A_T1, A_T2, A_HASNEXT, A_THR = 27, 28, 29, 30, 31, 32, 33, 34, 35
A_MSK = 36
A_P0 = 40

VKA, VVA = 2, 3
VDM = 4
VM, VL, VTHR = 16, 17, 18
VT = 19
FV, FK, FQ, OA, SA, PF, VX = 32, 64, 96, 128, 192, 224, 240


ASTAMP = os.environ.get("ASTAMP", "")
_an = [0]


def astamp(a, i):
    if not ASTAMP:
        return
    _an[0] += 1
    lab = "AST_%d" % _an[0]
    a("s_cmp_eq_u32 s%d, 5" % A_IT)
    a("s_cbranch_scc0 %s" % lab)
    a("s_waitcnt lgkmcnt(0)")
    a("s_memtime s[%d:%d]" % (60 + 2 * i, 61 + 2 * i))
    a("s_waitcnt lgkmcnt(0)")
    a.label(lab)


def astamp_dump(a, n):
    if not ASTAMP:
        return
    wv = int(ASTAMP)
    a("s_cmp_lg_u32 s2, 8")
    a("s_cbranch_scc1 AST_SKIP")
    a("s_cmp_lg_u32 s%d, %d" % (A_W, wv))
    a("s_cbranch_scc1 AST_SKIP")
    a("s_load_dwordx2 s[%d:%d], s[0:1], %d" % (56, 57, KA_DBG))
    a("s_waitcnt lgkmcnt(0)")
    srd(a, 52, 56, 256)
    a("v_mov_b32 v4, 0")
    for i in range(1, n):
        a("s_sub_u32 s%d, s%d, s60" % (60 + 2 * i, 60 + 2 * i))
        a("v_mov_b32 v2, s%d" % (60 + 2 * i))
        a("buffer_store_dword v2, v4, s[52:55], 0 offen offset:%d" % (32 + 4 * i))
    a.label("AST_SKIP")


def attn_dma_issue(a, j):
    if EXP == "a_nodma" and not getattr(a, "_first_dma", False):
        return
    isv = j >= 4
    jj = j & 3
    if isv:
        a("s_mul_i32 s%d, s%d, %d" % (A_T1, A_WQ, VPAD))
        a("s_add_u32 m0, s%d, s%d" % (A_PFK, A_T1))
        a("s_add_u32 m0, m0, %d" % (KT_BYTES + jj * 4 * VPAD))
    else:
        a("s_lshl_b32 s%d, s%d, 10" % (A_T1, A_WQ))
        a("s_add_u32 m0, s%d, s%d" % (A_PFK, A_T1))
        a("s_add_u32 m0, m0, %d" % (jj * 4096))
    a("s_lshl_b32 s%d, s%d, 11" % (A_T0, A_WQ))
    a("s_add_u32 s%d, s%d, s%d" % (A_T0, A_T0, A_KOFF))
    a("s_add_u32 s%d, s%d, %d" % (A_T0, A_T0, jj * 4 * 2048))
    srdn = ASRD_V if isv else ASRD_K
    a("buffer_load_dwordx4 v%d, s[%d:%d], s%d offen lds" % (VDM, srdn, srdn + 3, A_T0))


def gen_attn(a):
    name = "attn_kernel"
    kernel_header(a, name)
    a("s_cmp_ge_u32 s2, 256")
    a("s_cbranch_scc1 AT_EXIT")
    a("s_load_dwordx2 s[%d:%d], s[0:1], %d" % (A_P0, A_P0 + 1, KA_WS))
    a("v_lshrrev_b32 v1, 6, v0")
    a("s_nop 0")
    a("v_readfirstlane_b32 s%d, v1" % A_W)
    a("v_and_b32 v1, 63, v0")
    a("s_nop 3")
    a("s_lshr_b32 s%d, s%d, 2" % (A_HF, A_W))
    a("s_and_b32 s%d, s%d, 3" % (A_WQ, A_W))
    a("s_and_b32 s%d, s2, 7" % A_T0)
    a("s_lshr_b32 s%d, s2, 3" % A_T1)
    a("s_and_b32 s%d, s%d, 3" % (A_HD, A_T1))
    a("s_lshl_b32 s%d, s%d, 3" % (A_HD, A_HD))
    a("s_add_u32 s%d, s%d, s%d" % (A_HD, A_HD, A_T0))
    a("s_lshr_b32 s%d, s%d, 2" % (A_P, A_T1))
    a("s_mov_b32 s%d, 0x%08x" % (A_C, f32bits(SCALE_C)))
    a("s_waitcnt lgkmcnt(0)")
    for srdn, off, sz in ((ASRD_Q, WS_Q, SZ_QKV), (ASRD_K, WS_K, SZ_QKV), (ASRD_V, WS_V, SZ_QKV), (ASRD_Y, WS_Y, SZ_Y)):
        add64(a, A_P0 + 2, A_P0, off)
        srd(a, srdn, A_P0 + 2, sz)
    T = VT
    a("v_lshrrev_b32 v%d, 5, v1" % T)
    a("v_and_b32 v%d, 31, v1" % (T + 1))
    a("v_and_b32 v%d, 15, v1" % (T + 2))
    a("s_mul_i32 s%d, s%d, %d" % (A_T0, A_HF, HALF_BYTES))
    a("v_lshlrev_b32 v%d, 4, v%d" % (VKA, T + 1))
    a("v_lshl_add_u32 v%d, v%d, 10, v%d" % (VKA, T, VKA))
    a("v_add_u32 v%d, s%d, v%d" % (VKA, A_T0, VKA))
    a("v_lshrrev_b32 v%d, 2, v%d" % (T + 3, T + 2))
    a("v_and_b32 v%d, 3, v%d" % (T + 4, T + 2))
    a("v_bfe_u32 v%d, v1, 4, 1" % (T + 5))
    a("v_lshrrev_b32 v%d, 1, v%d" % (T + 6, T + 4))
    a("v_lshl_add_u32 v%d, v%d, 1, v%d" % (T + 5, T + 5, T + 6))
    a("v_mul_u32_u24 v%d, %d, v%d" % (T + 5, VPAD, T + 5))
    a("v_lshl_add_u32 v%d, v%d, 2, v%d" % (T + 6, T, T + 3))
    a("v_lshl_add_u32 v%d, v%d, 4, v%d" % (T + 5, T + 6, T + 5))
    a("v_and_b32 v%d, 1, v%d" % (T + 6, T + 4))
    a("v_lshl_add_u32 v%d, v%d, 3, v%d" % (T + 5, T + 6, T + 5))
    a("s_add_u32 s%d, s%d, %d" % (A_T1, A_T0, KT_BYTES))
    a("v_add_u32 v%d, s%d, v%d" % (VVA, A_T1, T + 5))
    a("v_lshlrev_b32 v%d, 4, v1" % VDM)
    a("s_lshl_b32 s%d, s%d, 5" % (A_T1, A_WQ))
    a("s_lshl_b32 s%d, s%d, 6" % (A_T2, A_HF))
    a("s_sub_u32 s%d, s%d, s%d" % (A_T1, A_T1, A_T2))
    a("v_add_u32 v%d, s%d, v%d" % (VTHR, A_T1, T + 1))
    a("v_lshlrev_b32 v%d, 2, v%d" % (T + 3, T))
    a("v_sub_u32 v%d, v%d, v%d" % (VTHR, VTHR, T + 3))
    a("v_mov_b32 v%d, 0xff800000" % VX)
    a("s_lshl_b32 s%d, s%d, 5" % (A_T1, A_WQ))
    a("v_add_u32 v%d, s%d, v%d" % (VX + 1, A_T1, T + 1))
    a("v_lshlrev_b32 v%d, 4, v%d" % (VX + 1, VX + 1))
    a("v_lshl_add_u32 v%d, v%d, 11, v%d" % (VX + 1, T, VX + 1))
    PRIO = os.environ.get("APRIO", "")
    if PRIO:
        hf, pr = PRIO.split(",")
        a("s_cmp_eq_u32 s%d, %s" % (A_HF, hf))
        a("s_cbranch_scc0 AT_NOPRIO")
        a("s_setprio %s" % pr)
        a.label("AT_NOPRIO")
    a("s_mov_b32 s%d, 0" % A_STG)
    a("s_mov_b32 s%d, 0" % A_PHASE)
    a("s_mul_i32 s%d, s%d, %d" % (A_PFK, A_HF, HALF_BYTES))

    def koff_first():
        a("s_lshl_b32 s%d, s%d, 15" % (A_KOFF, A_HD))
        a("s_lshl_b32 s%d, s%d, 10" % (A_T0, A_HF))
        a("s_add_u32 s%d, s%d, s%d" % (A_KOFF, A_KOFF, A_T0))
    koff_first()
    a._first_dma = True
    for j in range(8):
        attn_dma_issue(a, j)
    a._first_dma = False
    a("s_xor_b32 s%d, s%d, %d" % (A_PFK, A_PFK, 0))
    a("s_add_u32 s%d, s%d, %d" % (A_PFK, A_PFK, STG_BYTES))

    a.label("AT_QBLOCK")
    a("s_sub_u32 s%d, 15, s%d" % (A_T0, A_P))
    a("s_cmp_eq_u32 s%d, 0" % A_PHASE)
    a("s_cselect_b32 s%d, s%d, s%d" % (A_QB, A_T0, A_P))
    a("s_lshl_b32 s%d, s%d, 20" % (A_T0, A_QB))
    a("s_lshl_b32 s%d, s%d, 15" % (A_T1, A_HD))
    a("s_add_u32 s%d, s%d, s%d" % (A_T0, A_T0, A_T1))
    for s in range(8):
        a("s_add_u32 s%d, s%d, %d" % (A_T1, A_T0, s * 4096))
        a("buffer_load_dwordx4 v[%d:%d], v%d, s[%d:%d], s%d offen" % (
            FQ + 4 * s, FQ + 4 * s + 3, VX + 1, ASRD_Q, ASRD_Q + 3, A_T1))
    for r in range(64):
        a("v_mov_b32 v%d, 0" % (OA + r))
    a("v_mov_b32 v%d, 0xf149f2ca" % VM)
    a("v_mov_b32 v%d, 0" % VL)
    a("s_mov_b32 s%d, 0" % A_IT)

    a("s_mov_b32 s%d, 0x41000000" % A_THR)

    def qk_mfma(kb, s):
        if EXP == "a_nomfma":
            return
        acc = SA + 16 * kb
        a("v_mfma_f32_32x32x16_bf16 v[%d:%d], v[%d:%d], v[%d:%d], %s" % (
            acc, acc + 15, FK + 4 * s, FK + 4 * s + 3, FQ + 4 * s, FQ + 4 * s + 3,
            "0" if s == 0 else "v[%d:%d]" % (acc, acc + 15)))

    def pv_mfma(ks, db):
        if EXP == "a_nomfma":
            return
        f = ks * 4 + db
        sl = FV + 4 * (f % 8)
        acc = OA + 16 * db
        a("v_mfma_f32_32x32x16_bf16 v[%d:%d], v[%d:%d], v[%d:%d], v[%d:%d]" % (
            acc, acc + 15, sl, sl + 3, PF + 4 * ks, PF + 4 * ks + 3, acc, acc + 15))

    def max_list(kb):
        b = SA + 16 * kb
        t = T + kb
        L = ["v_max3_f32 v%d, v%d, v%d, v%d" % (t, b, b + 1, b + 2)]
        for r in range(3, 15, 2):
            L.append("v_max3_f32 v%d, v%d, v%d, v%d" % (t, t, b + r, b + r + 1))
        L.append("v_max_f32 v%d, v%d, v%d" % (t, t, b + 15))
        return L

    def exp_list(kb):
        b = SA + 16 * kb
        L = []
        for r in range(16):
            L.append("v_fma_f32 v%d, v%d, s%d, -v%d" % (b + r, b + r, A_C, T + 4))
        for r in range(16):
            L.append("v_exp_f32 v%d, v%d" % (b + r, b + r))
        for r in range(16):
            p = T + 5 + (r & 3)
            if kb == 0 and r < 4:
                L.append("v_add_f32 v%d, v%d, v%d" % (p, b + r, b + r + 4))
            elif kb == 0 and r < 8:
                continue
            else:
                L.append("v_add_f32 v%d, v%d, v%d" % (p, p, b + r))
        for c2 in range(2):
            ks = 2 * kb + c2
            for d2 in range(4):
                L.append("v_cvt_pk_bf16_f32 v%d, v%d, v%d" % (PF + 4 * ks + d2, b + 8 * c2 + 2 * d2, b + 8 * c2 + 2 * d2 + 1))
        return L

    def softmax_head():
        a("v_max_f32 v%d, v%d, v%d" % (T, T, T + 1))
        a("v_mov_b32 v%d, v%d" % (T + 1, T))
        a("v_permlane32_swap_b32 v%d, v%d" % (T, T + 1))
        a("v_max_f32 v%d, v%d, v%d" % (T, T, T + 1))
        a("v_sub_f32 v%d, v%d, v%d" % (T + 1, T, VM))
        a("v_mul_f32 v%d, s%d, v%d" % (T + 1, A_C, T + 1))
        a("v_cmp_lt_f32 vcc, s%d, v%d" % (A_THR, T + 1))
        lab = a.uid("AT_NR")
        a("s_nop 4")
        a("s_cbranch_vccz %s" % lab)
        a("v_max_f32 v%d, v%d, v%d" % (T + 2, T, VM))
        a("v_sub_f32 v%d, v%d, v%d" % (T + 3, VM, T + 2))
        a("v_mul_f32 v%d, s%d, v%d" % (T + 3, A_C, T + 3))
        a("v_exp_f32 v%d, v%d" % (T + 3, T + 3))
        a("v_mov_b32 v%d, v%d" % (VM, T + 2))
        a("s_nop 0")
        a("v_mul_f32 v%d, v%d, v%d" % (VL, VL, T + 3))
        for r in range(64):
            a("v_mul_f32 v%d, v%d, v%d" % (OA + r, T + 3, OA + r))
        a.label(lab)
        a("v_mul_f32 v%d, s%d, v%d" % (T + 4, A_C, VM))

    def softmax_tail():
        a("v_add_f32 v%d, v%d, v%d" % (T + 5, T + 5, T + 6))
        a("v_add_f32 v%d, v%d, v%d" % (T + 7, T + 7, T + 8))
        a("v_add_f32 v%d, v%d, v%d" % (T + 5, T + 5, T + 7))
        a("v_add_f32 v%d, v%d, v%d" % (VL, VL, T + 5))

    def toggle():
        a("s_mov_b32 s%d, %d" % (A_T1, -STG_BYTES & 0xffffffff))
        a("s_cmp_eq_u32 s%d, 0" % A_STG)
        a("s_cselect_b32 s%d, %d, s%d" % (A_T0, STG_BYTES, A_T1))
        a("v_add_u32 v%d, s%d, v%d" % (VKA, A_T0, VKA))
        a("v_add_u32 v%d, s%d, v%d" % (VVA, A_T0, VVA))
        a("s_add_u32 s%d, s%d, s%d" % (A_STG, A_STG, A_T0))
        a("s_sub_u32 s%d, s%d, s%d" % (A_PFK, A_PFK, A_T0))

    def sm_list(kb, masked):
        b = SA + 16 * kb
        t = T + kb
        L = []
        if EXP == "a_nosm":
            return L
        if masked:
            for r in range(16):
                cst = 32 * kb + 8 * (r >> 2) + (r & 3)
                L.append("v_cmp_gt_i32 vcc, %d, v%d" % (cst, VTHR))
                L.append("s_nop 1")
                L.append("v_cndmask_b32 v%d, v%d, v%d, vcc" % (b + r, b + r, VX))
        L.append("v_max3_f32 v%d, v%d, v%d, v%d" % (t, b, b + 1, b + 2))
        for r in range(3, 15, 2):
            L.append("v_max3_f32 v%d, v%d, v%d, v%d" % (t, t, b + r, b + r + 1))
        L.append("v_max_f32 v%d, v%d, v%d" % (t, t, b + 15))
        L.append("v_mov_b32 v%d, v%d" % (T + 2, t))
        L.append("v_permlane32_swap_b32 v%d, v%d" % (t, T + 2))
        L.append("v_max_f32 v%d, v%d, v%d" % (t, t, T + 2))
        L.append("v_sub_f32 v%d, v%d, v%d" % (T + 2, t, VM))
        L.append("v_mul_f32 v%d, s%d, v%d" % (T + 2, A_C, T + 2))
        L.append("v_cmp_lt_f32 vcc, s%d, v%d" % (A_THR, T + 2))
        if kb == 0:
            def head0():
                lab = a.uid("AT_NR")
                a("s_nop 4")
                a("s_cbranch_vccz %s" % lab)
                a("v_max_f32 v%d, v%d, v%d" % (T + 2, t, VM))
                a("v_sub_f32 v%d, v%d, v%d" % (T + 3, VM, T + 2))
                a("v_mul_f32 v%d, s%d, v%d" % (T + 3, A_C, T + 3))
                a("v_exp_f32 v%d, v%d" % (T + 3, T + 3))
                a("v_mov_b32 v%d, v%d" % (VM, T + 2))
                a("s_nop 0")
                a("v_mul_f32 v%d, v%d, v%d" % (VL, VL, T + 3))
                for r in range(64):
                    a("v_mul_f32 v%d, v%d, v%d" % (OA + r, T + 3, OA + r))
                a.label(lab)
            L.append(head0)
        else:
            def head1():
                lab = a.uid("AT_NR")
                a("v_mov_b32 v%d, 1.0" % (T + 3))
                a("s_mov_b64 s[%d:%d], vcc" % (A_MSK, A_MSK + 1))
                a("s_nop 3")
                a("s_cbranch_vccz %s" % lab)
                a("v_max_f32 v%d, v%d, v%d" % (T + 2, t, VM))
                a("v_sub_f32 v%d, v%d, v%d" % (T + 3, VM, T + 2))
                a("v_mul_f32 v%d, s%d, v%d" % (T + 3, A_C, T + 3))
                a("v_exp_f32 v%d, v%d" % (T + 3, T + 3))
                a("v_mov_b32 v%d, v%d" % (VM, T + 2))
                a.label(lab)
            L.append(head1)
        L.append("v_mul_f32 v%d, s%d, v%d" % (T + 4, A_C, VM))
        for r in range(16):
            L.append("v_fma_f32 v%d, v%d, s%d, -v%d" % (b + r, b + r, A_C, T + 4))
        for r in range(16):
            L.append("v_exp_f32 v%d, v%d" % (b + r, b + r))
        for r in range(4):
            L.append("v_add_f32 v%d, v%d, v%d" % (T + 5 + r, b + r, b + r + 4))
        for r in range(8, 16):
            L.append("v_add_f32 v%d, v%d, v%d" % (T + 5 + (r & 3), T + 5 + (r & 3), b + r))
        for c2 in range(2):
            ks = 2 * kb + c2
            for d2 in range(4):
                L.append("v_cvt_pk_bf16_f32 v%d, v%d, v%d" % (PF + 4 * ks + d2, b + 8 * c2 + 2 * d2, b + 8 * c2 + 2 * d2 + 1))
        L.append("v_add_f32 v%d, v%d, v%d" % (T + 5, T + 5, T + 6))
        L.append("v_add_f32 v%d, v%d, v%d" % (T + 7, T + 7, T + 8))
        L.append("v_add_f32 v%d, v%d, v%d" % (T + 5, T + 5, T + 7))
        if kb == 0:
            L.append("v_add_f32 v%d, v%d, v%d" % (VL, VL, T + 5))
        else:
            L.append("v_fma_f32 v%d, v%d, v%d, v%d" % (VL, VL, T + 3, T + 5))
        return L

    def emit_items(L, n):
        for _ in range(n):
            if not L:
                return
            it = L.pop(0)
            if callable(it):
                it()
            else:
                a(it)

    def body(diag):
        q = LdsQueue(a)
        kr, vr = {}, {}

        def kread(kb, s):
            a("ds_read_b128 v[%d:%d], v%d offset:%d" % (FK + 4 * s, FK + 4 * s + 3, VKA, s * 2048 + kb * 512))
            kr[(kb, s)] = q.issue()

        def vread(ks, db):
            f = ks * 4 + db
            sl = FV + 4 * (f % 8)
            a("ds_read_b64_tr_b16 v[%d:%d], v%d offset:%d" % (sl, sl + 1, VVA, db * 4 * VPAD + ks * 256))
            q.issue()
            a("ds_read_b64_tr_b16 v[%d:%d], v%d offset:%d" % (sl + 2, sl + 3, VVA, db * 4 * VPAD + ks * 256 + 128))
            vr[(ks, db)] = q.issue()

        dma = list(range(8)) if not diag else []
        if diag:
            a("s_cmp_eq_u32 s%d, 0" % A_HASNEXT)
            a("s_cbranch_scc1 AT_NODMA")
            for j in range(8):
                attn_dma_issue(a, j)
            a.label("AT_NODMA")
        if not diag:
            astamp(a, 2)
        for s in range(8):
            kread(0, s)
        for s in range(8):
            q.need(kr[(0, s)])
            qk_mfma(0, s)
            kread(1, s)
            if dma:
                attn_dma_issue(a, dma.pop(0))
        L0 = sm_list(0, diag)
        per = (len(L0) + 7) // 8
        for s in range(8):
            q.need(kr[(1, s)])
            qk_mfma(1, s)
            vread(s // 4, s % 4)
            emit_items(L0, per)
        emit_items(L0, 1000)
        if not diag:
            astamp(a, 3)
        L1 = sm_list(1, diag)
        per = (len(L1) + 7) // 8
        for ks in range(2):
            for db in range(4):
                q.need(vr[(ks, db)])
                pv_mfma(ks, db)
                vread(ks + 2, db)
                emit_items(L1, per)
        emit_items(L1, 1000)
        if not diag:
            astamp(a, 4)
        lab = a.uid("AT_NR")
        a("s_cmp_eq_u64 s[%d:%d], 0" % (A_MSK, A_MSK + 1))
        a("s_cbranch_scc1 %s" % lab)
        for r in range(64):
            a("v_mul_f32 v%d, v%d, v%d" % (OA + r, T + 3, OA + r))
        a.label(lab)
        if not diag:
            astamp(a, 5)
        for ks in range(2, 4):
            for db in range(4):
                q.need(vr[(ks, db)])
                pv_mfma(ks, db)
        if not diag:
            astamp(a, 6)
        toggle()

    a.label("AT_ITER")
    a("s_cmp_lt_u32 s%d, s%d" % (A_IT, A_QB))
    a("s_cbranch_scc0 AT_DIAG")
    a("s_add_u32 s%d, s%d, %d" % (A_KOFF, A_KOFF, BS_Q))
    astamp(a, 0)
    a("s_waitcnt vmcnt(0)")
    astamp(a, 1)
    a("s_barrier")
    body(False)
    a("s_add_u32 s%d, s%d, 1" % (A_IT, A_IT))
    a("s_branch AT_ITER")
    a.label("AT_DIAG")
    a("s_mov_b32 s%d, 0" % A_HASNEXT)
    a("s_cmp_eq_u32 s%d, 0" % A_PHASE)
    a("s_cbranch_scc0 AT_NEXT_DONE")
    a("s_mov_b32 s%d, 1" % A_HASNEXT)
    koff_first()
    a.label("AT_NEXT_DONE")
    a("s_waitcnt vmcnt(0)")
    a("s_barrier")
    body(True)

    a("v_mov_b32 v%d, v%d" % (T, VL))
    a("s_nop 1")
    a("v_permlane32_swap_b32 v%d, v%d" % (VL, T))
    a("v_add_f32 v%d, v%d, v%d" % (VL, VL, T))
    a("s_barrier")
    a("s_cmp_eq_u32 s%d, 0" % A_STG)
    a("s_cselect_b32 s%d, %d, 0" % (A_T0, STG_BYTES))
    a("s_lshr_b32 s%d, s%d, 1" % (A_T1, A_WQ))
    a("s_mul_i32 s%d, s%d, %d" % (A_T1, A_T1, HALF_BYTES))
    a("s_add_u32 s%d, s%d, s%d" % (A_T0, A_T0, A_T1))
    a("s_and_b32 s%d, s%d, 1" % (A_T1, A_WQ))
    a("s_lshl_b32 s%d, s%d, 14" % (A_T1, A_T1))
    a("s_add_u32 s%d, s%d, s%d" % (A_T0, A_T0, A_T1))
    a("v_lshlrev_b32 v%d, 4, v1" % T)
    a("v_add_u32 v%d, s%d, v%d" % (T, A_T0, T))
    a("s_lshl_b32 s%d, s%d, 9" % (A_T1, A_WQ))
    a("s_add_u32 s%d, s%d, %d" % (A_T1, A_T1, AT_LDS_ML))
    a("v_lshlrev_b32 v%d, 3, v1" % (T + 1))
    a("v_add_u32 v%d, s%d, v%d" % (T + 1, A_T1, T + 1))
    a("s_cmp_eq_u32 s%d, 0" % A_HF)
    a("s_cbranch_scc1 AT_MERGE_WAIT")
    a.mfma_gap(12)
    for g in range(16):
        a("ds_write_b128 v%d, v[%d:%d] offset:%d" % (T, OA + 4 * g, OA + 4 * g + 3, g * 1024))
    a("v_mov_b32 v%d, v%d" % (VX + 6, VM))
    a("v_mov_b32 v%d, v%d" % (VX + 7, VL))
    a("ds_write_b64 v%d, v[%d:%d]" % (T + 1, VX + 6, VX + 7))
    a("s_waitcnt lgkmcnt(0)")
    a.label("AT_MERGE_WAIT")
    a("s_barrier")
    a("s_cmp_eq_u32 s%d, 0" % A_HF)
    a("s_cbranch_scc0 AT_MERGE_DONE")
    PO = FV
    for g in range(16):
        a("ds_read_b128 v[%d:%d], v%d offset:%d" % (PO + 4 * g, PO + 4 * g + 3, T, g * 1024))
    a("ds_read_b64 v[%d:%d], v%d" % (VX + 6, VX + 7, T + 1))
    a("s_waitcnt lgkmcnt(0)")
    a("v_mov_b32 v%d, v%d" % (T + 2, VX + 6))
    a("v_mov_b32 v%d, v%d" % (T + 3, VX + 7))
    a("v_max_f32 v%d, v%d, v%d" % (T + 4, VM, T + 2))
    a("v_sub_f32 v%d, v%d, v%d" % (T + 5, VM, T + 4))
    a("v_sub_f32 v%d, v%d, v%d" % (T + 6, T + 2, T + 4))
    a("v_mul_f32 v%d, s%d, v%d" % (T + 5, A_C, T + 5))
    a("v_mul_f32 v%d, s%d, v%d" % (T + 6, A_C, T + 6))
    a("v_exp_f32 v%d, v%d" % (T + 5, T + 5))
    a("v_exp_f32 v%d, v%d" % (T + 6, T + 6))
    a("s_nop 0")
    a("v_mul_f32 v%d, v%d, v%d" % (T + 7, VL, T + 5))
    a("v_fma_f32 v%d, v%d, v%d, v%d" % (T + 7, T + 3, T + 6, T + 7))
    a("v_rcp_f32 v%d, v%d" % (T + 7, T + 7))
    a("s_nop 0")
    a("v_mul_f32 v%d, v%d, v%d" % (T + 5, T + 5, T + 7))
    a("v_mul_f32 v%d, v%d, v%d" % (T + 6, T + 6, T + 7))
    a.mfma_gap(12)
    for r in range(64):
        a("v_mul_f32 v%d, v%d, v%d" % (OA + r, OA + r, T + 5))
    for r in range(64):
        a("v_fma_f32 v%d, v%d, v%d, v%d" % (OA + r, PO + r, T + 6, OA + r))
    a("s_mul_i32 s%d, s%d, %d" % (A_T1, A_QB, BS_Y))
    a("s_lshl_b32 s%d, s%d, 15" % (A_T2, A_HD))
    a("s_add_u32 s%d, s%d, s%d" % (A_T1, A_T1, A_T2))
    k = 0
    for db in range(4):
        for qp in range(2):
            dq = PF + 4 * (k & 3)
            for qi in range(2):
                r0 = OA + 16 * db + 4 * (2 * qp + qi)
                a("v_cvt_pk_bf16_f32 v%d, v%d, v%d" % (dq + 2 * qi, r0, r0 + 1))
                a("v_cvt_pk_bf16_f32 v%d, v%d, v%d" % (dq + 2 * qi + 1, r0 + 2, r0 + 3))
            a("s_nop 1")
            a("v_permlane32_swap_b32 v%d, v%d" % (dq, dq + 2))
            a("v_permlane32_swap_b32 v%d, v%d" % (dq + 1, dq + 3))
            a("s_add_u32 s%d, s%d, %d" % (A_T2, A_T1, (4 * db + 2 * qp) * 2048))
            a("buffer_store_dwordx4 v[%d:%d], v%d, s[%d:%d], s%d offen" % (dq, dq + 3, VX + 1, ASRD_Y, ASRD_Y + 3, A_T2))
            k += 1
    a.label("AT_MERGE_DONE")
    a("s_add_u32 s%d, s%d, 1" % (A_PHASE, A_PHASE))
    a("s_cmp_lt_u32 s%d, 2" % A_PHASE)
    a("s_cbranch_scc1 AT_QBLOCK")
    astamp_dump(a, 7)
    a.label("AT_EXIT")
    a("s_endpgm")
    return name, 256, AT_LDS, 256


GC_SPLIT = 4
GC_STAGES = KC // 32
GC_PER = (GC_STAGES + GC_SPLIT - 1) // GC_SPLIT
SZ_P = GC_SPLIT * S * M * 4


def gen_gemm_c(a):
    name = "gemmc_kernel"
    c = GemmCfg(2)
    kernel_header(a, name)
    NWG = 256
    a("s_cmp_ge_u32 s2, %d" % NWG)
    a("s_cbranch_scc1 GC_EXIT")
    a("s_and_b32 s%d, s2, 7" % S_T0)
    a("s_lshr_b32 s%d, s2, 3" % S_T1)
    a("s_lshl_b32 s%d, s%d, 1" % (S_MT, S_T0))
    a("s_and_b32 s%d, s%d, 1" % (S_T0, S_T1))
    a("s_add_u32 s%d, s%d, s%d" % (S_MT, S_MT, S_T0))
    a("s_lshr_b32 s%d, s%d, 1" % (S_NT, S_T1))
    a("s_and_b32 s%d, s%d, 3" % (S_NT, S_NT))
    a("s_lshr_b32 s%d, s%d, 3" % (S_FLAG, S_T1))
    P = S_P
    a("s_load_dwordx2 s[%d:%d], s[0:1], %d" % (P, P + 1, KA_WO))
    a("s_load_dwordx2 s[%d:%d], s[0:1], %d" % (P + 2, P + 3, KA_W2))
    a("s_load_dwordx2 s[%d:%d], s[0:1], %d" % (P + 4, P + 5, KA_WS))
    a("v_lshrrev_b32 v1, 6, v0")
    a("s_nop 0")
    a("v_readfirstlane_b32 s%d, v1" % S_W)
    a("s_nop 3")
    a("s_lshr_b32 s%d, s%d, 1" % (S_WN, S_W))
    a("s_and_b32 s%d, s%d, 1" % (S_WM, S_W))
    a("s_waitcnt lgkmcnt(0)")
    a("s_mov_b32 s%d, 1024" % S_WSTR)
    add64(a, P + 6, P + 4, WS_Y)
    srd(a, SRD_X, P + 6, SZ_Y)
    add64(a, P + 6, P + 4, WS_P)
    srd(a, SRD_O, P + 6, SZ_P)
    a("s_mul_i32 s%d, s%d, %d" % (S_PFG, S_FLAG, GC_PER))
    a("s_mov_b32 s%d, %d" % (S_NST, GC_PER))
    a("s_cmp_eq_u32 s%d, %d" % (S_FLAG, GC_SPLIT - 1))
    a("s_cselect_b32 s%d, %d, s%d" % (S_NST, GC_STAGES - (GC_SPLIT - 1) * GC_PER, S_NST))
    a("s_cmp_ge_u32 s%d, 128" % S_PFG)
    a("s_cbranch_scc1 GC_W2")
    srd(a, SRD_W, P, HD * M * 2)
    a("s_mov_b32 s%d, s%d" % (S_T1, S_PFG))
    a("s_branch GC_WSET")
    a.label("GC_W2")
    srd(a, SRD_W, P + 2, F * M * 2)
    a("s_sub_u32 s%d, s%d, 128" % (S_T1, S_PFG))
    a.label("GC_WSET")
    a("s_lshl_b32 s%d, s%d, 15" % (S_T1, S_T1))
    a("s_lshl_b32 s%d, s%d, 8" % (S_T0, S_NT))
    a("s_add_u32 s%d, s%d, s%d" % (S_T1, S_T1, S_T0))
    for j in range(c.NWPW):
        a("s_add_u32 s%d, s%d, %d" % (S_T0, S_W, 4 * j))
        a("s_mul_i32 s%d, s%d, %d" % (S_T0, S_T0, c.RPI * 1024))
        a("s_add_u32 s%d, s%d, s%d" % (S_WOFF + j, S_T0, S_T1))
    a("s_mov_b32 s%d, %d" % (S_WINC, 32 * 1024))
    for j in range(c.NXPW):
        a("s_mul_i32 s%d, s%d, %d" % (S_T0, S_MT, BS_Y))
        a("s_lshl_b32 s%d, s%d, 11" % (S_T1, S_W))
        a("s_add_u32 s%d, s%d, s%d" % (S_T0, S_T0, S_T1))
        a("s_lshl_b32 s%d, s%d, 13" % (S_T1, S_PFG))
        a("s_add_u32 s%d, s%d, s%d" % (S_T0, S_T0, S_T1))
        a("s_add_u32 s%d, s%d, %d" % (S_XOFF + j, S_T0, 1024 * j))
    gemm_lane_setup(a, c)
    hook_n = [0]

    def hook():
        hook_n[0] += 1
        lab = "GC_NOSW_%d" % hook_n[0]
        a("s_add_u32 s%d, s%d, 1" % (S_PFG, S_PFG))
        a("s_cmp_eq_u32 s%d, 128" % S_PFG)
        a("s_cbranch_scc0 %s" % lab)
        srd(a, SRD_W, P + 2, F * M * 2)
        for j in range(c.NWPW):
            a("s_sub_u32 s%d, s%d, %d" % (S_WOFF + j, S_WOFF + j, 128 * 32 * 1024))
        a.label(lab)

    gemm_mainloop(a, c, "gc", hook)
    a("s_lshl_b32 s%d, s%d, 22" % (S_T0, S_FLAG))
    a("s_lshl_b32 s%d, s%d, 2" % (S_T1, S_MT))
    a("s_add_u32 s%d, s%d, s%d" % (S_T1, S_T1, S_NT))
    a("s_lshl_b32 s%d, s%d, 16" % (S_T1, S_T1))
    a("s_add_u32 s%d, s%d, s%d" % (S_T0, S_T0, S_T1))
    a("s_lshl_b32 s%d, s%d, 14" % (S_T1, S_W))
    a("s_add_u32 s%d, s%d, s%d" % (S_T0, S_T0, S_T1))
    a("v_lshlrev_b32 v%d, 4, v1" % c.V_T)
    for blk in range(4):
        for qd in range(4):
            r = c.ACC + blk * 16 + qd * 4
            a("buffer_store_dwordx4 v[%d:%d], v%d, s[%d:%d], s%d offen offset:%d" % (
                r, r + 3, c.V_T, SRD_O, SRD_O + 3, S_T0, ((blk * 4 + qd) * 1024) % 4096))
            if (blk * 4 + qd) % 4 == 3:
                a("s_add_u32 s%d, s%d, 4096" % (S_T0, S_T0))
    a.label("GC_EXIT")
    a("s_endpgm")
    return name, c.ACC + c.NACC + 8, c.NSLOT * c.SLOT, NWG


def gen_reduce(a):
    name = "reduce_kernel"
    kernel_header(a, name)
    NWG = 1024
    a("s_cmp_ge_u32 s2, %d" % NWG)
    a("s_cbranch_scc1 RD_EXIT")
    a("s_load_dwordx2 s[4:5], s[0:1], %d" % KA_X)
    a("s_load_dwordx2 s[6:7], s[0:1], %d" % KA_B2)
    a("s_load_dwordx2 s[24:25], s[0:1], %d" % KA_OUT)
    a("s_load_dwordx2 s[26:27], s[0:1], %d" % KA_WS)
    a("s_lshl_b32 s3, s2, 8")
    a("v_add_u32 v1, s3, v0")
    a("v_lshlrev_b32 v2, 4, v1")
    a("v_and_b32 v3, 63, v1")
    a("v_bfe_u32 v4, v1, 6, 2")
    a("v_bfe_u32 v5, v1, 8, 2")
    a("v_bfe_u32 v6, v1, 10, 2")
    a("v_lshrrev_b32 v7, 12, v1")
    a("v_lshrrev_b32 v8, 2, v7")
    a("v_lshlrev_b32 v8, 7, v8")
    a("v_and_b32 v9, 1, v6")
    a("v_lshl_add_u32 v8, v9, 6, v8")
    a("v_and_b32 v9, 1, v5")
    a("v_lshl_add_u32 v8, v9, 5, v8")
    a("v_and_b32 v9, 31, v3")
    a("v_add_u32 v8, v8, v9")
    a("v_and_b32 v9, 3, v7")
    a("v_lshlrev_b32 v9, 7, v9")
    a("v_lshrrev_b32 v10, 1, v6")
    a("v_lshl_add_u32 v9, v10, 6, v9")
    a("v_lshrrev_b32 v10, 1, v5")
    a("v_lshl_add_u32 v9, v10, 5, v9")
    a("v_lshl_add_u32 v9, v4, 3, v9")
    a("v_lshrrev_b32 v10, 5, v3")
    a("v_lshl_add_u32 v9, v10, 2, v9")
    a("v_lshl_add_u32 v10, v8, 9, v9")
    a("v_lshlrev_b32 v10, 1, v10")
    a("v_lshlrev_b32 v11, 1, v9")
    a("s_waitcnt lgkmcnt(0)")
    srd(a, 8, 4, S * M * 2)
    srd(a, 12, 6, M * 2)
    srd(a, 16, 24, S * M * 2)
    add64(a, 26, 26, WS_P)
    srd(a, 20, 26, SZ_P)
    for sp in range(GC_SPLIT):
        a("s_mov_b32 s28, %d" % (sp * S * M * 4))
        a("buffer_load_dwordx4 v[%d:%d], v2, s[20:23], s28 offen" % (12 + 4 * sp, 15 + 4 * sp))
    a("buffer_load_dwordx2 v[28:29], v10, s[8:11], 0 offen")
    a("buffer_load_dwordx2 v[30:31], v11, s[12:15], 0 offen")
    a("s_waitcnt vmcnt(0)")
    for e in range(4):
        a("v_add_f32 v%d, v%d, v%d" % (12 + e, 12 + e, 16 + e))
        a("v_add_f32 v%d, v%d, v%d" % (20 + e, 20 + e, 24 + e))
    for e in range(4):
        a("v_add_f32 v%d, v%d, v%d" % (12 + e, 12 + e, 20 + e))
    a("v_lshlrev_b32 v16, 16, v28")
    a("v_and_b32 v17, 0xffff0000, v28")
    a("v_lshlrev_b32 v18, 16, v29")
    a("v_and_b32 v19, 0xffff0000, v29")
    a("v_lshlrev_b32 v20, 16, v30")
    a("v_and_b32 v21, 0xffff0000, v30")
    a("v_lshlrev_b32 v22, 16, v31")
    a("v_and_b32 v23, 0xffff0000, v31")
    for e in range(4):
        a("v_add_f32 v%d, v%d, v%d" % (12 + e, 12 + e, 20 + e))
    for e in range(4):
        a("v_add_f32 v%d, v%d, v%d" % (12 + e, 12 + e, 16 + e))
    a("v_cvt_pk_bf16_f32 v12, v12, v13")
    a("v_cvt_pk_bf16_f32 v13, v14, v15")
    a("buffer_store_dwordx2 v[12:13], v10, s[16:19], 0 offen")
    a.label("RD_EXIT")
    a("s_endpgm")
    return name, 32, NWG


def build(out_path):
    a = Asm()
    descs, launches = [], []
    n, v, nwg = gen_ln(a)
    descs.append(kernel_desc(n, v))
    launches.append("; @launch kernel=%s grid=(%d,1,1) block=(256,1,1) lds=0" % (n, nwg))
    n, v, lds, nwg = gen_gemm_a(a)
    descs.append(kernel_desc(n, v))
    launches.append("; @launch kernel=%s grid=(%d,1,1) block=(256,1,1) lds=%d" % (n, nwg, lds))
    n, v, lds, nwg = gen_attn(a)
    descs.append(kernel_desc(n, v))
    launches.append("; @launch kernel=%s grid=(%d,1,1) block=(512,1,1) lds=%d" % (n, nwg, lds))
    n, v, lds, nwg = gen_gemm_c(a)
    descs.append(kernel_desc(n, v))
    launches.append("; @launch kernel=%s grid=(%d,1,1) block=(256,1,1) lds=%d" % (n, nwg, lds))
    n, v, nwg = gen_reduce(a)
    descs.append(kernel_desc(n, v))
    launches.append("; @launch kernel=%s grid=(%d,1,1) block=(256,1,1) lds=0" % (n, nwg))
    hdr = open("parallel_sum__compressed_kv_cla__dense_activation_gelu__prompt.s.ref").read()
    cmt = [ln for ln in hdr.splitlines() if ln.startswith(";") and "@launch" not in ln and "Override" not in ln and "grid=ceil" not in ln]
    txt = "\n".join(cmt) + "\n" + "\n".join(launches) + "\n"
    txt += '.amdgcn_target "amdgcn-amd-amdhsa--gfx950"\n.text\n' + a.text()
    txt += '.section .rodata,"a"\n' + "".join(descs)
    open(out_path, "w").write(txt)


if __name__ == "__main__":
    build(sys.argv[1] if len(sys.argv) > 1 else "k.s")
```

```python
import sys, math, os
sys.path.insert(0, "dev")
from asmlib import *

S, M, H, D, F = 2048, 512, 32, 128, 1376
HD = H * D
KC = HD + F
TB = 128
GR = TB * 16
YCH = 704

KA_X, KA_CKV, KA_WQ, KA_WUK, KA_WUV, KA_WO, KA_BX, KA_W1, KA_B1, KA_W2, KA_B2, KA_OUT, KA_DBG, KA_WS = \
    [8 * i for i in range(14)]

MBy = 1 << 20
WS_XN = 0
WS_CK = 2 * MBy
WS_Q = 4 * MBy
WS_K = 20 * MBy
WS_V = 36 * MBy
WS_Y = 52 * MBy
WS_P = 80 * MBy
BS_X = 64 * GR
BS_Q = 512 * GR
BS_Y = YCH * GR
SZ_XN = 16 * BS_X
SZ_QKV = 16 * BS_Q
SZ_Y = 16 * BS_Y
LOG2E = 1.4426950408889634

EXP = os.environ.get("EXP", "")
ST_FLAGS = os.environ.get("ST_FLAGS", "")


class LdsQueue:
    def __init__(self, a):
        self.a = a
        self.n_issued = 0
        self.done_upto = -1

    def issue(self):
        self.n_issued += 1
        return self.n_issued - 1

    def need(self, idx):
        if idx <= self.done_upto:
            return
        n = min(self.n_issued - 1 - idx, 15)
        self.a("s_waitcnt lgkmcnt(%d)" % n)
        self.done_upto = self.n_issued - 1 - n


def gen_ln(a):
    name = "ln_kernel"
    kernel_header(a, name)
    NROW = 1024
    NPF = 8 * 28
    NWG = NROW + NPF
    a("s_cmp_ge_u32 s2, %d" % NWG)
    a("s_cbranch_scc1 LN_EXIT")
    a("s_cmp_ge_u32 s2, %d" % NROW)
    a("s_cbranch_scc1 LN_PF")
    a("s_load_dwordx2 s[4:5], s[0:1], %d" % KA_X)
    a("s_load_dwordx2 s[6:7], s[0:1], %d" % KA_WS)
    a("s_load_dwordx2 s[16:17], s[0:1], %d" % KA_CKV)
    a("v_lshrrev_b32 v1, 6, v0")
    a("v_and_b32 v2, 63, v0")
    a("s_and_b32 s3, s2, 511")
    a("s_lshl_b32 s3, s3, 2")
    a("v_add_u32 v1, s3, v1")
    a("v_lshlrev_b32 v3, 10, v1")
    a("v_lshl_add_u32 v3, v2, 4, v3")
    a("v_lshrrev_b32 v20, 7, v1")
    a("v_lshlrev_b32 v20, 17, v20")
    a("v_and_b32 v21, 127, v1")
    a("v_lshl_add_u32 v21, v2, 7, v21")
    a("v_lshl_add_u32 v20, v21, 4, v20")
    a("s_waitcnt lgkmcnt(0)")
    a("s_cmp_ge_u32 s2, 512")
    a("s_cbranch_scc1 LN_COPY")
    srd(a, 8, 4, S * M * 2)
    add64(a, 6, 6, WS_XN)
    srd(a, 12, 6, SZ_XN)
    a("buffer_load_dwordx4 v[4:7], v3, s[8:11], 0 offen")
    a("s_waitcnt vmcnt(0)")
    for d in range(4):
        a("v_lshlrev_b32 v%d, 16, v%d" % (8 + 2 * d, 4 + d))
        a("v_and_b32 v%d, 0xffff0000, v%d" % (9 + 2 * d, 4 + d))

    def tree_sum(dst, regs):
        a("v_add_f32 v%d, v%d, v%d" % (dst, regs[0], regs[1]))
        for r in regs[2:]:
            a("v_add_f32 v%d, v%d, v%d" % (dst, dst, r))

    def wave_reduce(v, sdst):
        for sh in (1, 2, 4, 8):
            a("s_nop 1")
            a("v_add_f32_dpp v%d, v%d, v%d row_shr:%d row_mask:0xf bank_mask:0xf bound_ctrl:0" % (v, v, v, sh))
        a("s_nop 1")
        a("v_add_f32_dpp v%d, v%d, v%d row_bcast:15 row_mask:0xa bank_mask:0xf" % (v, v, v))
        a("s_nop 1")
        a("v_add_f32_dpp v%d, v%d, v%d row_bcast:31 row_mask:0xc bank_mask:0xf" % (v, v, v))
        a("s_nop 1")
        a("v_readlane_b32 s%d, v%d, 63" % (sdst, v))
        a("s_nop 3")

    tree_sum(16, list(range(8, 16)))
    wave_reduce(16, 20)
    a("v_mov_b32 v17, s20")
    a("v_mul_f32 v17, 0x3b000000, v17")
    for i in range(8):
        a("v_sub_f32 v%d, v%d, v17" % (24 + i, 8 + i))
    for i in range(8):
        a("v_mul_f32 v%d, v%d, v%d" % (24 + i, 24 + i, 24 + i))
    tree_sum(18, list(range(24, 32)))
    wave_reduce(18, 21)
    a("v_mov_b32 v18, s21")
    a("v_mul_f32 v18, 0x3b000000, v18")

    def bfr(v):
        a("v_cvt_pk_bf16_f32 v%d, v%d, v%d" % (v, v, v))
        a("v_lshlrev_b32 v%d, 16, v%d" % (v, v))
    bfr(17)
    bfr(18)
    a("v_add_f32 v18, 0x3727c5ac, v18")
    bfr(18)
    a("v_sqrt_f32 v18, v18")
    a("s_nop 0")
    bfr(18)
    a("v_rcp_f32 v19, v18")
    for i in range(8):
        a("v_sub_f32 v%d, v%d, v17" % (24 + i, 8 + i))
    for i in range(0, 8, 2):
        a("v_cvt_pk_bf16_f32 v%d, v%d, v%d" % (32 + i // 2, 24 + i, 25 + i))
    for i in range(4):
        a("v_lshlrev_b32 v%d, 16, v%d" % (24 + 2 * i, 32 + i))
        a("v_and_b32 v%d, 0xffff0000, v%d" % (25 + 2 * i, 32 + i))
    for i in range(8):
        a("v_mul_f32 v%d, v%d, v19" % (36 + i, 24 + i))
    for i in range(8):
        a("v_fma_f32 v%d, -v%d, v18, v%d" % (44 + i, 36 + i, 24 + i))
    for i in range(8):
        a("v_fma_f32 v%d, v%d, v19, v%d" % (36 + i, 44 + i, 36 + i))
    for i in range(4):
        a("v_cvt_pk_bf16_f32 v%d, v%d, v%d" % (4 + i, 36 + 2 * i, 37 + 2 * i))
    a("buffer_store_dwordx4 v[4:7], v20, s[12:15], 0 offen")
    a("s_endpgm")
    a.label("LN_COPY")
    srd(a, 8, 16, S * M * 2)
    add64(a, 6, 6, WS_CK)
    srd(a, 12, 6, SZ_XN)
    a("buffer_load_dwordx4 v[4:7], v3, s[8:11], 0 offen")
    a("s_waitcnt vmcnt(0)")
    a("buffer_store_dwordx4 v[4:7], v20, s[12:15], 0 offen")
    a("s_endpgm")
    a.label("LN_PF")
    a("s_sub_u32 s3, s2, %d" % NROW)
    a("s_and_b32 s4, s3, 7")
    a("s_lshr_b32 s5, s3, 3")
    a("s_lshr_b32 s6, s5, 2")
    a("s_lshl_b32 s6, s6, 3")
    a("s_add_u32 s6, s6, s4")
    a("s_and_b32 s5, s5, 3")
    a("s_cmp_ge_u32 s6, 54")
    a("s_cbranch_scc1 LN_EXIT")
    a("s_load_dwordx2 s[8:9], s[0:1], %d" % KA_WQ)
    a("s_load_dwordx2 s[10:11], s[0:1], %d" % KA_WUK)
    a("s_load_dwordx2 s[12:13], s[0:1], %d" % KA_WUV)
    a("s_load_dwordx2 s[14:15], s[0:1], %d" % KA_W1)
    a("s_waitcnt lgkmcnt(0)")
    a("s_cmp_lt_u32 s6, 6")
    a("s_cbranch_scc1 LN_PF_FFN")
    a("s_sub_u32 s7, s6, 6")
    a("s_lshr_b32 s20, s7, 4")
    a("s_and_b32 s7, s7, 15")
    a("s_cmp_eq_u32 s20, 1")
    a("s_cselect_b32 s8, s10, s8")
    a("s_cselect_b32 s9, s11, s9")
    a("s_cmp_eq_u32 s20, 2")
    a("s_cselect_b32 s8, s12, s8")
    a("s_cselect_b32 s9, s13, s9")
    srd(a, 16, 8, M * HD * 2)
    a("s_mov_b32 s21, 8192")
    a("s_branch LN_PF_GO")
    a.label("LN_PF_FFN")
    srd(a, 16, 14, M * F * 2)
    a("s_mov_b32 s7, s6")
    a("s_mov_b32 s21, %d" % (F * 2))
    a.label("LN_PF_GO")
    a("s_lshl_b32 s22, s5, 7")
    a("v_lshrrev_b32 v1, 5, v0")
    a("v_add_u32 v1, s22, v1")
    a("v_mul_lo_u32 v1, v1, s21")
    a("v_and_b32 v2, 31, v0")
    a("v_lshl_add_u32 v1, v2, 4, v1")
    a("s_lshl_b32 s7, s7, 9")
    a("s_lshl_b32 s23, s21, 3")
    for i in range(16):
        a("buffer_load_dwordx4 v[%d:%d], v1, s[16:19], s7 offen" % (4 + 4 * (i % 8), 7 + 4 * (i % 8)))
        a("s_add_u32 s7, s7, s23")
    a.label("LN_EXIT")
    a("s_endpgm")
    return name, 64, NWG


class GemmCfg:
    def __init__(self, NB):
        self.NB = NB
        self.BN = 2 * 32 * NB
        self.BM = 128
        self.RB = self.BN * 2
        self.WBYTES = 32 * self.RB
        self.XBYTES = 4 * GR
        self.SLOT = self.WBYTES + self.XBYTES
        self.NSLOT = 3
        self.RPI = 1024 // self.RB
        self.NWI = self.WBYTES // 1024
        self.NXI = self.XBYTES // 1024
        self.NWPW = self.NWI // 4
        self.NXPW = self.NXI // 4
        self.ND = self.NWPW + self.NXPW
        self.V_AADDR = 2
        self.V_BADDR = 6
        self.V_DMAW = 8
        self.V_DMAX = 9
        self.V_T = 10
        self.FA = 16
        self.FB = self.FA + 2 * NB * 4
        self.ACC = 64
        self.NACC = NB * 2 * 16
        self.V_EP = self.ACC + self.NACC

    def acc(self, nb, mb):
        return self.ACC + (nb * 2 + mb) * 16

    def fa(self, s, nb):
        return self.FA + (s * self.NB + nb) * 4

    def fb(self, s, mb):
        return self.FB + (s * 2 + mb) * 4


S_W = 3
SRD_X, SRD_W, SRD_O, SRD_B = 8, 12, 16, 20
S_WOFF = 24
S_XOFF = 28
S_STAGE, S_NST, S_CUR, S_PF, S_WINC, S_DELTA, S_T0, S_T1, S_PFW, S_PFX, S_WSTR = 30, 31, 32, 33, 34, 35, 36, 37, 38, 39, 40
S_FLAG, S_MT, S_NT, S_OCH, S_OBS, S_WN, S_WM, S_PFG = 42, 43, 44, 45, 46, 47, 48, 49
S_P = 50


def gemm_lane_setup(a, c):
    T = c.V_T
    a("v_and_b32 v1, 63, v0")
    a("v_lshrrev_b32 v%d, 5, v1" % T)
    a("v_and_b32 v%d, 15, v1" % (T + 1))
    a("v_lshrrev_b32 v%d, 2, v%d" % (T + 2, T + 1))
    a("v_and_b32 v%d, 3, v%d" % (T + 3, T + 1))
    a("v_bfe_u32 v%d, v1, 4, 1" % (T + 4))
    a("v_lshl_add_u32 v%d, v%d, 3, v%d" % (T + 5, T, T + 2))
    a("v_mul_u32_u24 v%d, %d, v%d" % (T + 5, c.RB, T + 5))
    a("v_lshlrev_b32 v%d, 5, v%d" % (T + 4, T + 4))
    a("v_lshl_add_u32 v%d, v%d, 3, v%d" % (T + 4, T + 3, T + 4))
    a("v_add_u32 v%d, v%d, v%d" % (T + 5, T + 5, T + 4))
    a("s_mul_i32 s%d, s%d, %d" % (S_T0, S_WN, c.NB))
    for nb in range(c.NB):
        a("s_add_u32 s%d, s%d, %d" % (S_T1, S_T0, nb))
        a("v_xor_b32 v%d, s%d, v%d" % (c.V_AADDR + nb, S_T1, T + 2))
        a("v_lshl_add_u32 v%d, v%d, 6, v%d" % (c.V_AADDR + nb, c.V_AADDR + nb, T + 5))
    a("v_and_b32 v%d, 31, v1" % (T + 2))
    a("s_lshl_b32 s%d, s%d, 6" % (S_T0, S_WM))
    a("v_add_u32 v%d, s%d, v%d" % (T + 2, S_T0, T + 2))
    a("v_lshlrev_b32 v%d, 4, v%d" % (T + 2, T + 2))
    a("v_lshl_add_u32 v%d, v%d, 11, v%d" % (T + 2, T, T + 2))
    a("v_add_u32 v%d, %d, v%d" % (c.V_BADDR, c.WBYTES, T + 2))
    CR = c.RB // 16
    sh = int(math.log2(CR))
    a("v_lshrrev_b32 v%d, %d, v1" % (T, sh))
    a("v_and_b32 v%d, %d, v1" % (T + 1, CR - 1))
    a("v_lshrrev_b32 v%d, 2, v%d" % (T + 2, T + 1))
    if c.RPI == 2:
        a("s_and_b32 s%d, s%d, 1" % (S_T0, S_W))
        a("s_lshl_b32 s%d, s%d, 1" % (S_T0, S_T0))
        a("v_add_u32 v%d, s%d, v%d" % (T + 3, S_T0, T))
    else:
        a("v_mov_b32 v%d, v%d" % (T + 3, T))
    a("v_xor_b32 v%d, v%d, v%d" % (T + 2, T + 2, T + 3))
    a("v_and_b32 v%d, 3, v%d" % (T + 1, T + 1))
    a("v_lshlrev_b32 v%d, 4, v%d" % (T + 1, T + 1))
    a("v_lshl_add_u32 v%d, v%d, 6, v%d" % (T + 1, T + 2, T + 1))
    a("v_mul_lo_u32 v%d, v%d, s%d" % (T, T, S_WSTR))
    a("v_add_u32 v%d, v%d, v%d" % (c.V_DMAW, T, T + 1))
    a("v_lshlrev_b32 v%d, 4, v1" % c.V_DMAX)


def gemm_dma_piece(a, c, idx):
    if EXP == "nodma":
        return
    if idx < c.NWPW:
        j = idx
        a("s_add_u32 m0, s%d, %d" % (S_PFW, 4096 * j))
        a("s_nop 0")
        a("buffer_load_dwordx4 v%d, s[%d:%d], s%d offen lds" % (c.V_DMAW, SRD_W, SRD_W + 3, S_WOFF + j))
        a("s_add_u32 s%d, s%d, s%d" % (S_WOFF + j, S_WOFF + j, S_WINC))
    else:
        j = idx - c.NWPW
        a("s_add_u32 m0, s%d, %d" % (S_PFX, 1024 * j))
        a("s_nop 0")
        a("buffer_load_dwordx4 v%d, s[%d:%d], s%d offen lds" % (c.V_DMAX, SRD_X, SRD_X + 3, S_XOFF + j))
        a("s_add_u32 s%d, s%d, 8192" % (S_XOFF + j, S_XOFF + j))


def gemm_pf_advance(a, c):
    a("s_add_u32 s%d, s%d, %d" % (S_PF, S_PF, c.SLOT))
    a("s_cmp_eq_u32 s%d, %d" % (S_PF, c.NSLOT * c.SLOT))
    a("s_cselect_b32 s%d, 0, s%d" % (S_PF, S_PF))
    a("s_lshl_b32 s%d, s%d, 10" % (S_T0, S_W))
    a("s_add_u32 s%d, s%d, s%d" % (S_PFW, S_PF, S_T0))
    a("s_lshl_b32 s%d, s%d, 11" % (S_T0, S_W))
    a("s_add_u32 s%d, s%d, s%d" % (S_PFX, S_PF, S_T0))
    a("s_add_u32 s%d, s%d, %d" % (S_PFX, S_PFX, c.WBYTES))


def gemm_stage(a, c, issue, wait_n, hook=None):
    a("s_waitcnt vmcnt(%d)" % wait_n)
    a("s_barrier")
    q = LdsQueue(a)
    ra, rb = {}, {}
    for s in range(2):
        order = [("A", 0), ("B", 0), ("B", 1)] + [("A", nb) for nb in range(1, c.NB)]
        for kind, x in order:
            if EXP == "dmaonly":
                ra[(s, x)] = rb[(s, x)] = -1
                continue
            if kind == "A":
                f = c.fa(s, x)
                off = s * 16 * c.RB
                a("ds_read_b64_tr_b16 v[%d:%d], v%d offset:%d" % (f, f + 1, c.V_AADDR + x, off))
                q.issue()
                a("ds_read_b64_tr_b16 v[%d:%d], v%d offset:%d" % (f + 2, f + 3, c.V_AADDR + x, off + 4 * c.RB))
                ra[(s, x)] = q.issue()
            else:
                f = c.fb(s, x)
                a("ds_read_b128 v[%d:%d], v%d offset:%d" % (f, f + 3, c.V_BADDR, s * 4096 + x * 512))
                rb[(s, x)] = q.issue()
    a("s_add_u32 s%d, s%d, %d" % (S_T0, S_CUR, c.SLOT))
    a("s_cmp_eq_u32 s%d, %d" % (S_T0, c.NSLOT * c.SLOT))
    a("s_cselect_b32 s%d, 0, s%d" % (S_T0, S_T0))
    a("s_sub_u32 s%d, s%d, s%d" % (S_DELTA, S_T0, S_CUR))
    a("s_mov_b32 s%d, s%d" % (S_CUR, S_T0))
    for nb in range(c.NB):
        a("v_add_u32 v%d, s%d, v%d" % (c.V_AADDR + nb, S_DELTA, c.V_AADDR + nb))
    a("v_add_u32 v%d, s%d, v%d" % (c.V_BADDR, S_DELTA, c.V_BADDR))
    nm = 0
    pieces = list(range(c.ND)) if issue else []
    for s in range(2):
        for nb in range(c.NB):
            for mb in range(2):
                q.need(max(ra[(s, nb)], rb[(s, mb)]))
                acc = c.acc(nb, mb)
                if EXP in ("nomfma", "dmaonly"):
                    nm += 1
                    if pieces and nm % 2 == 1:
                        gemm_dma_piece(a, c, pieces.pop(0))
                    continue
                a("v_mfma_f32_32x32x16_bf16 v[%d:%d], v[%d:%d], v[%d:%d], v[%d:%d]" % (
                    acc, acc + 15, c.fa(s, nb), c.fa(s, nb) + 3, c.fb(s, mb), c.fb(s, mb) + 3, acc, acc + 15))
                nm += 1
                if pieces and nm % 2 == 1:
                    gemm_dma_piece(a, c, pieces.pop(0))
    while pieces:
        gemm_dma_piece(a, c, pieces.pop(0))
    if issue:
        gemm_pf_advance(a, c)
    if hook:
        hook()


def gemm_mainloop(a, c, tag, stage_hook=None):
    a("s_mov_b32 s%d, 0" % S_CUR)
    a("s_mov_b32 s%d, %d" % (S_PF, (c.NSLOT - 1) * c.SLOT))
    gemm_pf_advance(a, c)
    for st in range(2):
        for p in range(c.ND):
            gemm_dma_piece(a, c, p)
        gemm_pf_advance(a, c)
        if stage_hook:
            stage_hook()
    for r in range(c.NACC):
        a("v_mov_b32 v%d, 0" % (c.ACC + r))
    a("s_mov_b32 s%d, 0" % S_STAGE)
    a("s_sub_u32 s%d, s%d, 2" % (S_NST, S_NST))
    if EXP == "noloop" and tag == "ga":
        a("s_branch L_ga_done")
    a.label("L_%s_loop" % tag)
    gemm_stage(a, c, True, c.ND, stage_hook)
    a("s_add_u32 s%d, s%d, 1" % (S_STAGE, S_STAGE))
    a("s_cmp_lt_u32 s%d, s%d" % (S_STAGE, S_NST))
    a("s_cbranch_scc1 L_%s_loop" % tag)
    gemm_stage(a, c, False, c.ND)
    gemm_stage(a, c, False, 0)
    if tag == "ga":
        a.label("L_ga_done")
    a("s_waitcnt vmcnt(0)")
    a("s_nop 15")
    a("s_nop 7")


def gemm_store_granule(a, c, gelu):
    NB = c.NB
    T = c.V_T
    EP = c.V_EP
    a("v_and_b32 v%d, 31, v1" % T)
    a("v_lshlrev_b32 v%d, 4, v%d" % (T, T))
    a("v_lshrrev_b32 v%d, 5, v1" % (T + 1))
    a("v_lshl_add_u32 v%d, v%d, 11, v%d" % (T, T + 1, T))
    a("s_mul_i32 s%d, s%d, s%d" % (S_T0, S_MT, S_OBS))
    a("s_mul_i32 s%d, s%d, %d" % (S_T1, S_WN, 4 * NB))
    a("s_add_u32 s%d, s%d, s%d" % (S_T1, S_T1, S_OCH))
    a("s_lshl_b32 s%d, s%d, 11" % (S_T1, S_T1))
    a("s_add_u32 s%d, s%d, s%d" % (S_T0, S_T0, S_T1))
    a("s_lshl_b32 s%d, s%d, 10" % (S_T1, S_WM))
    a("s_add_u32 s%d, s%d, s%d" % (S_T0, S_T0, S_T1))
    if gelu:
        BR = EP + 16
        a("v_lshrrev_b32 v%d, 5, v1" % (T + 2))
        a("v_lshlrev_b32 v%d, 3, v%d" % (T + 2, T + 2))
        a("s_sub_u32 s%d, s%d, 512" % (S_T1, S_OCH))
        a("s_lshl_b32 s%d, s%d, 4" % (S_T1, S_T1))
        a("s_mul_i32 s%d, s%d, %d" % (S_DELTA, S_WN, NB * 64))
        a("s_add_u32 s%d, s%d, s%d" % (S_T1, S_T1, S_DELTA))
        for nb in range(NB):
            for qd in range(4):
                r = BR + (nb * 4 + qd) * 2
                a("buffer_load_dwordx2 v[%d:%d], v%d, s[%d:%d], s%d offen offset:%d" % (
                    r, r + 1, T + 2, SRD_B, SRD_B + 3, S_T1, nb * 64 + qd * 16))
        a("s_mov_b32 s%d, 0x%08x" % (S_DELTA, f32bits(-2.0 * 0.7978845608028654 * LOG2E * 0.044715)))
        a("v_mov_b32 v%d, 0x%08x" % (EP + 15, f32bits(-2.0 * 0.7978845608028654 * LOG2E)))
        a("s_waitcnt vmcnt(0)")
    k = 0
    for nb in range(NB):
        for mb in range(2):
            for qp in range(2):
                dq = EP + 4 + 4 * (k & 1) if True else 0
                for qi in range(2):
                    qd = 2 * qp + qi
                    r0 = c.acc(nb, mb) + 4 * qd
                    if gelu:
                        br = EP + 16 + (nb * 4 + qd) * 2
                        U = EP + 12
                        W0 = EP
                        a("v_lshlrev_b32 v%d, 16, v%d" % (U, br))
                        a("v_and_b32 v%d, 0xffff0000, v%d" % (U + 1, br))
                        a("v_lshlrev_b32 v%d, 16, v%d" % (U + 2, br + 1))
                        a("v_and_b32 v%d, 0xffff0000, v%d" % (W0 + 3, br + 1))
                        a("v_add_f32 v%d, v%d, v%d" % (r0, r0, U))
                        a("v_add_f32 v%d, v%d, v%d" % (r0 + 1, r0 + 1, U + 1))
                        a("v_add_f32 v%d, v%d, v%d" % (r0 + 2, r0 + 2, U + 2))
                        a("v_add_f32 v%d, v%d, v%d" % (r0 + 3, r0 + 3, W0 + 3))
                        for e in range(4):
                            a("v_mul_f32 v%d, v%d, v%d" % (W0 + e, r0 + e, r0 + e))
                        for e in range(4):
                            a("v_fma_f32 v%d, v%d, s%d, v%d" % (W0 + e, W0 + e, S_DELTA, EP + 15))
                        for e in range(4):
                            a("v_mul_f32 v%d, v%d, v%d" % (W0 + e, W0 + e, r0 + e))
                        for e in range(4):
                            a("v_exp_f32 v%d, v%d" % (W0 + e, W0 + e))
                        for e in range(4):
                            a("v_add_f32 v%d, 1.0, v%d" % (W0 + e, W0 + e))
                        for e in range(4):
                            a("v_rcp_f32 v%d, v%d" % (W0 + e, W0 + e))
                        for e in range(4):
                            a("v_mul_f32 v%d, v%d, v%d" % (r0 + e, r0 + e, W0 + e))
                    a("v_cvt_pk_bf16_f32 v%d, v%d, v%d" % (dq + 2 * qi, r0, r0 + 1))
                    a("v_cvt_pk_bf16_f32 v%d, v%d, v%d" % (dq + 2 * qi + 1, r0 + 2, r0 + 3))
                a("s_nop 1")
                a("v_permlane32_swap_b32 v%d, v%d" % (dq, dq + 2))
                a("v_permlane32_swap_b32 v%d, v%d" % (dq + 1, dq + 3))
                off = (nb * 4 + 2 * qp) * 2048 + mb * 512
                a("s_add_u32 s%d, s%d, %d" % (S_T1, S_T0, off))
                if EXP != "nostore":
                    a("buffer_store_dwordx4 v[%d:%d], v%d, s[%d:%d], s%d offen%s" % (dq, dq + 3, T, SRD_O, SRD_O + 3, S_T1, ST_FLAGS))
                k += 1


def gen_gemm_a(a):
    name = "gemma_kernel"
    c = GemmCfg(4)
    kernel_header(a, name)
    NWG = 8 * 16 * 7
    a("s_cmp_ge_u32 s2, %d" % NWG)
    a("s_cbranch_scc1 GA_EXIT")
    a("s_and_b32 s%d, s2, 7" % S_T0)
    a("s_lshr_b32 s%d, s2, 3" % S_T1)
    a("s_and_b32 s%d, s%d, 15" % (S_MT, S_T1))
    a("s_lshr_b32 s%d, s%d, 4" % (S_T1, S_T1))
    a("s_lshl_b32 s%d, s%d, 3" % (S_T1, S_T1))
    a("s_add_u32 s%d, s%d, s%d" % (S_NT, S_T1, S_T0))
    a("s_cmp_ge_u32 s%d, 54" % S_NT)
    a("s_cbranch_scc1 GA_EXIT")
    P = S_P
    a("s_load_dwordx2 s[%d:%d], s[0:1], %d" % (P + 2, P + 3, KA_WQ))
    a("s_load_dwordx2 s[%d:%d], s[0:1], %d" % (P + 4, P + 5, KA_WUK))
    a("s_load_dwordx2 s[%d:%d], s[0:1], %d" % (P + 6, P + 7, KA_WUV))
    a("s_load_dwordx2 s[%d:%d], s[0:1], %d" % (P + 8, P + 9, KA_W1))
    a("s_load_dwordx2 s[%d:%d], s[0:1], %d" % (P + 10, P + 11, KA_B1))
    a("s_load_dwordx2 s[%d:%d], s[0:1], %d" % (P + 12, P + 13, KA_WS))
    a("v_lshrrev_b32 v1, 6, v0")
    a("s_nop 0")
    a("v_readfirstlane_b32 s%d, v1" % S_W)
    a("s_nop 3")
    a("s_lshr_b32 s%d, s%d, 1" % (S_WN, S_W))
    a("s_and_b32 s%d, s%d, 1" % (S_WM, S_W))
    a("s_waitcnt lgkmcnt(0)")
    WS = P + 12
    srd(a, SRD_B, P + 10, F * 2)
    a("s_cmp_lt_u32 s%d, 6" % S_NT)
    a("s_cbranch_scc1 GA_FFN")
    a("s_sub_u32 s%d, s%d, 6" % (S_T0, S_NT))
    a("s_lshr_b32 s%d, s%d, 4" % (S_T1, S_T0))
    a("s_and_b32 s%d, s%d, 15" % (S_T0, S_T0))
    a("s_lshl_b32 s%d, s%d, 5" % (S_OCH, S_T0))
    a("s_mov_b32 s%d, 0" % S_FLAG)
    a("s_mov_b32 s%d, 8192" % S_WSTR)
    a("s_mov_b32 s%d, %d" % (S_OBS, BS_Q))
    a("s_cmp_eq_u32 s%d, 1" % S_T1)
    a("s_cselect_b32 s%d, s%d, s%d" % (P + 14, P + 4, P + 2))
    a("s_cselect_b32 s%d, s%d, s%d" % (P + 15, P + 5, P + 3))
    a("s_cmp_eq_u32 s%d, 2" % S_T1)
    a("s_cselect_b32 s%d, s%d, s%d" % (P + 14, P + 6, P + 14))
    a("s_cselect_b32 s%d, s%d, s%d" % (P + 15, P + 7, P + 15))
    srd(a, SRD_W, P + 14, M * HD * 2)
    a("s_cmp_eq_u32 s%d, 0" % S_T1)
    a("s_cselect_b32 s%d, %d, %d" % (S_DELTA, WS_XN, WS_CK))
    a("s_add_u32 s%d, s%d, s%d" % (P + 16, WS, S_DELTA))
    a("s_addc_u32 s%d, s%d, 0" % (P + 17, WS + 1))
    srd(a, SRD_X, P + 16, SZ_XN)
    a("s_mul_i32 s%d, s%d, %d" % (S_T1, S_T1, WS_K - WS_Q))
    a("s_add_u32 s%d, s%d, %d" % (S_T1, S_T1, WS_Q))
    a("s_add_u32 s%d, s%d, s%d" % (P + 18, WS, S_T1))
    a("s_addc_u32 s%d, s%d, 0" % (P + 19, WS + 1))
    srd(a, SRD_O, P + 18, SZ_QKV)
    a("s_lshl_b32 s%d, s%d, 9" % (S_T1, S_T0))
    a("s_branch GA_COMMON")
    a.label("GA_FFN")
    a("s_lshl_b32 s%d, s%d, 5" % (S_OCH, S_NT))
    a("s_add_u32 s%d, s%d, 512" % (S_OCH, S_OCH))
    a("s_mov_b32 s%d, 1" % S_FLAG)
    a("s_mov_b32 s%d, %d" % (S_WSTR, F * 2))
    a("s_mov_b32 s%d, %d" % (S_OBS, BS_Y))
    srd(a, SRD_W, P + 8, M * F * 2)
    add64(a, P + 16, WS, WS_XN)
    srd(a, SRD_X, P + 16, SZ_XN)
    add64(a, P + 18, WS, WS_Y)
    srd(a, SRD_O, P + 18, SZ_Y)
    a("s_lshl_b32 s%d, s%d, 9" % (S_T1, S_NT))
    a.label("GA_COMMON")
    for j in range(c.NWPW):
        a("s_add_u32 s%d, s%d, %d" % (S_T0, S_W, 4 * j))
        a("s_mul_i32 s%d, s%d, %d" % (S_T0, S_T0, c.RPI))
        a("s_mul_i32 s%d, s%d, s%d" % (S_T0, S_T0, S_WSTR))
        a("s_add_u32 s%d, s%d, s%d" % (S_WOFF + j, S_T0, S_T1))
    a("s_mul_i32 s%d, s%d, 32" % (S_WINC, S_WSTR))
    for j in range(c.NXPW):
        a("s_mul_i32 s%d, s%d, %d" % (S_T0, S_MT, BS_X))
        a("s_lshl_b32 s%d, s%d, 11" % (S_T1, S_W))
        a("s_add_u32 s%d, s%d, s%d" % (S_T0, S_T0, S_T1))
        a("s_add_u32 s%d, s%d, %d" % (S_XOFF + j, S_T0, 1024 * j))
    gemm_lane_setup(a, c)
    a("s_mov_b32 s%d, %d" % (S_NST, M // 32))
    gemm_mainloop(a, c, "ga")
    a("s_cmp_eq_u32 s%d, 1" % S_FLAG)
    a("s_cbranch_scc1 GA_EP_GELU")
    gemm_store_granule(a, c, False)
    a("s_endpgm")
    a.label("GA_EP_GELU")
    gemm_store_granule(a, c, True)
    a.label("GA_EXIT")
    a("s_endpgm")
    return name, 256, c.NSLOT * c.SLOT, NWG


SCALE_C = (D ** -0.5) * LOG2E
VPAD = 1088
KT_BYTES = 16 * 1024
VT_BYTES = 16 * VPAD
STG_BYTES = KT_BYTES + VT_BYTES
HALF_BYTES = 2 * STG_BYTES
AT_LDS_ML = 2 * HALF_BYTES
AT_LDS = AT_LDS_ML + 2048

A_W, A_HF, A_WQ, A_HD, A_P, A_QB, A_IT, A_PHASE = 3, 4, 5, 6, 7, 24, 25, 26
ASRD_Q, ASRD_K, ASRD_V, ASRD_Y = 8, 12, 16, 20
A_PAR, A_HB, A_BASE, A_C, A_T0, A_T1, A_T2, A_KG, A_VG, A_THR = 27, 28, 29, 30, 31, 32, 33, 34, 35, 38
A_MSK = 36
A_DOK, A_DOV = 39, 40
A_P0 = 42

VKA, VVA, VDM, VM, VL, VTHR, VNEG, VQO = 2, 3, 4, 5, 6, 7, 8, 9
PFA, PFB = 16, 24
FQ = 32
SAB = {(0, 0): 64, (0, 1): 80, (1, 0): 96, (1, 1): 112}
OA = 128
KR, VRG = 192, 208
VT = 224
VX = 248
ASTAMP = os.environ.get("ASTAMP", "")


def gen_attn(a):
    name = "attn_kernel"
    kernel_header(a, name)
    a("s_cmp_ge_u32 s2, 256")
    a("s_cbranch_scc1 AT_EXIT")
    CLK_STAMP = os.environ.get("CLK", "") == "1"
    if CLK_STAMP:
        a("s_memtime s[60:61]")
        a("s_memrealtime s[62:63]")
    a("s_load_dwordx2 s[%d:%d], s[0:1], %d" % (A_P0, A_P0 + 1, KA_WS))
    a("s_load_dwordx2 s[52:53], s[0:1], %d" % KA_WO)
    a("s_load_dwordx2 s[54:55], s[0:1], %d" % KA_W2)
    a("v_lshrrev_b32 v1, 6, v0")
    a("s_nop 0")
    a("v_readfirstlane_b32 s%d, v1" % A_W)
    a("v_and_b32 v1, 63, v0")
    a("s_nop 3")
    a("s_lshr_b32 s%d, s%d, 2" % (A_HF, A_W))
    a("s_and_b32 s%d, s%d, 3" % (A_WQ, A_W))
    a("s_and_b32 s%d, s2, 7" % A_T0)
    a("s_lshr_b32 s%d, s2, 3" % A_T1)
    a("s_and_b32 s%d, s%d, 3" % (A_HD, A_T1))
    a("s_lshl_b32 s%d, s%d, 3" % (A_HD, A_HD))
    a("s_add_u32 s%d, s%d, s%d" % (A_HD, A_HD, A_T0))
    a("s_lshr_b32 s%d, s%d, 2" % (A_P, A_T1))
    a("s_mov_b32 s%d, 0x%08x" % (A_C, f32bits(SCALE_C)))
    a("s_mov_b32 s%d, 0x41000000" % A_THR)
    a("s_waitcnt lgkmcnt(0)")
    srd(a, 44, 52, HD * M * 2)
    srd(a, 48, 54, F * M * 2)
    a("s_lshl_b32 s%d, s2, 3" % A_T0)
    a("s_add_u32 s%d, s%d, s%d" % (A_T0, A_T0, A_W))
    a("v_lshlrev_b32 v2, 4, v1")
    a("s_lshl_b32 s%d, s%d, 11" % (A_T1, A_T0))
    a("buffer_load_dwordx4 v[192:195], v2, s[44:47], s%d offen" % A_T1)
    a("buffer_load_dwordx4 v[196:199], v2, s[44:47], s%d offen offset:1024" % A_T1)
    a("s_lshl_b32 s%d, s%d, 10" % (A_T1, A_T0))
    a("buffer_load_dwordx4 v[200:203], v2, s[48:51], s%d offen" % A_T1)
    for srdn, off, sz in ((ASRD_Q, WS_Q, SZ_QKV), (ASRD_K, WS_K, SZ_QKV), (ASRD_V, WS_V, SZ_QKV), (ASRD_Y, WS_Y, SZ_Y)):
        add64(a, A_P0 + 2, A_P0, off)
        srd(a, srdn, A_P0 + 2, sz)
    T = VT
    a("v_lshrrev_b32 v%d, 5, v1" % T)
    a("v_and_b32 v%d, 31, v1" % (T + 1))
    a("v_and_b32 v%d, 15, v1" % (T + 2))
    a("s_mul_i32 s%d, s%d, %d" % (A_HB, A_HF, HALF_BYTES))
    a("v_lshlrev_b32 v%d, 4, v%d" % (VKA, T + 1))
    a("v_lshl_add_u32 v%d, v%d, 10, v%d" % (VKA, T, VKA))
    a("v_add_u32 v%d, s%d, v%d" % (VKA, A_HB, VKA))
    a("v_lshrrev_b32 v%d, 2, v%d" % (T + 3, T + 2))
    a("v_and_b32 v%d, 3, v%d" % (T + 4, T + 2))
    a("v_bfe_u32 v%d, v1, 4, 1" % (T + 5))
    a("v_lshrrev_b32 v%d, 1, v%d" % (T + 6, T + 4))
    a("v_lshl_add_u32 v%d, v%d, 1, v%d" % (T + 5, T + 5, T + 6))
    a("v_mul_u32_u24 v%d, %d, v%d" % (T + 5, VPAD, T + 5))
    a("v_lshl_add_u32 v%d, v%d, 2, v%d" % (T + 6, T, T + 3))
    a("v_lshl_add_u32 v%d, v%d, 4, v%d" % (T + 5, T + 6, T + 5))
    a("v_and_b32 v%d, 1, v%d" % (T + 6, T + 4))
    a("v_lshl_add_u32 v%d, v%d, 3, v%d" % (T + 5, T + 6, T + 5))
    a("s_add_u32 s%d, s%d, %d" % (A_T1, A_HB, KT_BYTES))
    a("v_add_u32 v%d, s%d, v%d" % (VVA, A_T1, T + 5))
    a("v_lshlrev_b32 v%d, 4, v1" % VDM)
    a("s_lshl_b32 s%d, s%d, 5" % (A_T1, A_WQ))
    a("s_lshl_b32 s%d, s%d, 6" % (A_T2, A_HF))
    a("s_sub_u32 s%d, s%d, s%d" % (A_T1, A_T1, A_T2))
    a("v_add_u32 v%d, s%d, v%d" % (VTHR, A_T1, T + 1))
    a("v_lshlrev_b32 v%d, 2, v%d" % (T + 3, T))
    a("v_sub_u32 v%d, v%d, v%d" % (VTHR, VTHR, T + 3))
    a("v_mov_b32 v%d, 0xff800000" % VNEG)
    a("s_lshl_b32 s%d, s%d, 5" % (A_T1, A_WQ))
    a("v_add_u32 v%d, s%d, v%d" % (VQO, A_T1, T + 1))
    a("v_lshlrev_b32 v%d, 4, v%d" % (VQO, VQO))
    a("v_lshl_add_u32 v%d, v%d, 11, v%d" % (VQO, T, VQO))
    a("s_lshl_b32 s%d, s%d, 15" % (A_BASE, A_HD))
    a("s_lshl_b32 s%d, s%d, 10" % (A_T0, A_HF))
    a("s_add_u32 s%d, s%d, s%d" % (A_BASE, A_BASE, A_T0))
    a("s_mov_b32 s%d, 0" % A_PHASE)
    a("s_mov_b32 s%d, 0" % A_PAR)

    def dma_piece(isv, jj, par, sg):
        if isv:
            a("s_mul_i32 s%d, s%d, %d" % (A_T1, A_WQ, VPAD))
            a("s_add_u32 s%d, s%d, s%d" % (A_T1, A_T1, A_HB))
            a("s_add_u32 m0, s%d, %d" % (A_T1, par * STG_BYTES + KT_BYTES + jj * 4 * VPAD))
        else:
            a("s_lshl_b32 s%d, s%d, 10" % (A_T1, A_WQ))
            a("s_add_u32 s%d, s%d, s%d" % (A_T1, A_T1, A_HB))
            a("s_add_u32 m0, s%d, %d" % (A_T1, par * STG_BYTES + jj * 4096))
        a("s_lshl_b32 s%d, s%d, 11" % (A_T0, A_WQ))
        a("s_add_u32 s%d, s%d, s%d" % (A_T0, A_T0, sg))
        a("s_add_u32 s%d, s%d, %d" % (A_T0, A_T0, jj * 4 * 2048))
        srdn = ASRD_V if isv else ASRD_K
        a("buffer_load_dwordx4 v%d, s[%d:%d], s%d offen lds" % (VDM, srdn, srdn + 3, A_T0))

    a("s_mov_b32 s%d, s%d" % (A_KG, A_BASE))
    for jj in range(4):
        dma_piece(False, jj, 0, A_KG)
    for jj in range(4):
        dma_piece(True, jj, 0, A_KG)

    def sm_list(sb):
        raise NotImplementedError

    def make_sm(sb, pf):
        t = T
        L = []
        L.append("v_max3_f32 v%d, v%d, v%d, v%d" % (t, sb, sb + 1, sb + 2))
        for r in range(3, 15, 2):
            L.append("v_max3_f32 v%d, v%d, v%d, v%d" % (t, t, sb + r, sb + r + 1))
        L.append("v_max_f32 v%d, v%d, v%d" % (t, t, sb + 15))
        L.append("v_mov_b32 v%d, v%d" % (T + 2, t))
        L.append("v_permlane32_swap_b32 v%d, v%d" % (t, T + 2))
        L.append("v_max_f32 v%d, v%d, v%d" % (t, t, T + 2))
        L.append("v_sub_f32 v%d, v%d, v%d" % (T + 2, t, VM))
        L.append("v_mul_f32 v%d, s%d, v%d" % (T + 2, A_C, T + 2))
        L.append("v_cmp_lt_f32 vcc, s%d, v%d" % (A_THR, T + 2))

        def head():
            lab = a.uid("AT_NR")
            a("v_mov_b32 v%d, 1.0" % (T + 3))
            a("s_mov_b64 s[%d:%d], vcc" % (A_MSK, A_MSK + 1))
            a("s_nop 3")
            a("s_cbranch_vccz %s" % lab)
            a("v_max_f32 v%d, v%d, v%d" % (T + 2, t, VM))
            a("v_sub_f32 v%d, v%d, v%d" % (T + 3, VM, T + 2))
            a("v_mul_f32 v%d, s%d, v%d" % (T + 3, A_C, T + 3))
            a("v_exp_f32 v%d, v%d" % (T + 3, T + 3))
            a("v_mov_b32 v%d, v%d" % (VM, T + 2))
            a.label(lab)
        L.append(head)
        L.append("v_mul_f32 v%d, s%d, v%d" % (T + 4, A_C, VM))
        for r in range(16):
            L.append("v_fma_f32 v%d, v%d, s%d, -v%d" % (sb + r, sb + r, A_C, T + 4))
        for r in range(16):
            L.append("v_exp_f32 v%d, v%d" % (sb + r, sb + r))
        for r in range(4):
            L.append("v_add_f32 v%d, v%d, v%d" % (T + 5 + r, sb + r, sb + r + 4))
        for r in range(8, 16):
            L.append("v_add_f32 v%d, v%d, v%d" % (T + 5 + (r & 3), T + 5 + (r & 3), sb + r))
        for c2 in range(2):
            for d2 in range(4):
                L.append("v_cvt_pk_bf16_f32 v%d, v%d, v%d" % (pf + 4 * c2 + d2, sb + 8 * c2 + 2 * d2, sb + 8 * c2 + 2 * d2 + 1))
        L.append("v_add_f32 v%d, v%d, v%d" % (T + 5, T + 5, T + 6))
        L.append("v_add_f32 v%d, v%d, v%d" % (T + 7, T + 7, T + 8))
        L.append("v_add_f32 v%d, v%d, v%d" % (T + 5, T + 5, T + 7))
        L.append("v_fma_f32 v%d, v%d, v%d, v%d" % (VL, VL, T + 3, T + 5))
        return L

    SM_SPLIT = 38

    def emit_items(L, n):
        for _ in range(n):
            if not L:
                return
            it = L.pop(0)
            if callable(it):
                it()
            else:
                a(it)

    def rescale_point():
        lab = a.uid("AT_RS")
        a("s_cmp_eq_u64 s[%d:%d], 0" % (A_MSK, A_MSK + 1))
        a("s_cbranch_scc1 %s" % lab)
        for r in range(64):
            a("v_mul_f32 v%d, v%d, v%d" % (OA + r, T + 3, OA + r))
        a.label(lab)

    def mask_block(par):
        for kb in range(2):
            sb = SAB[(par, kb)]
            for r in range(16):
                cst = 32 * kb + 8 * (r >> 2) + (r & 3)
                a("v_cmp_gt_i32 vcc, %d, v%d" % (cst, VTHR))
                a("s_nop 1")
                a("v_cndmask_b32 v%d, v%d, v%d, vcc" % (sb + r, sb + r, VNEG))

    class Stream:
        def __init__(self):
            self.q = LdsQueue(a)
            self.kn = 0
            self.vn = 0

        def kread(self, kb, s, kpar):
            sl = KR + 4 * (self.kn % 4)
            self.kn += 1
            a("ds_read_b128 v[%d:%d], v%d offset:%d" % (sl, sl + 3, VKA, kpar * STG_BYTES + s * 2048 + kb * 512))
            return (sl, self.q.issue())

        def vread(self, ks, db, vpar):
            sl = VRG + 4 * (self.vn % 4)
            self.vn += 1
            base = vpar * STG_BYTES + db * 4 * VPAD + ks * 256
            a("ds_read_b64_tr_b16 v[%d:%d], v%d offset:%d" % (sl, sl + 1, VVA, base))
            self.q.issue()
            a("ds_read_b64_tr_b16 v[%d:%d], v%d offset:%d" % (sl + 2, sl + 3, VVA, base + 128))
            return (sl, self.q.issue())

    def run_phases(phases, dmas, pre_items=None):
        st = Stream()
        slots = []
        for ph in phases:
            for j in range(8):
                slots.append((ph, j))
        LA = 3
        reads = {}

        def issue_read(i):
            if i >= len(slots) or i in reads:
                return
            ph, j = slots[i]
            if ph["kind"] == "qk":
                reads[i] = st.kread(ph["kb"], j, ph["kpar"])
            else:
                ks = ph["ks0"] + j // 4
                reads[i] = st.vread(ks, j % 4, ph["vpar"])
        for i in range(min(LA, len(slots))):
            issue_read(i)
        if pre_items:
            emit_items(pre_items, 6)
        for i, (ph, j) in enumerate(slots):
            if j == 0 and ph.get("before"):
                ph["before"]()
            sl, idx = reads[i]
            st.q.need(idx)
            if ph["kind"] == "qk":
                acc = ph["sb"]
                a("v_mfma_f32_32x32x16_bf16 v[%d:%d], v[%d:%d], v[%d:%d], %s" % (
                    acc, acc + 15, sl, sl + 3, FQ + 4 * j, FQ + 4 * j + 3, "0" if j == 0 else "v[%d:%d]" % (acc, acc + 15)))
            else:
                acc = OA + 16 * (j % 4)
                pf = ph["pf"] + 4 * (j // 4)
                a("v_mfma_f32_32x32x16_bf16 v[%d:%d], v[%d:%d], v[%d:%d], v[%d:%d]" % (
                    acc, acc + 15, sl, sl + 3, pf, pf + 3, acc, acc + 15))
            issue_read(i + LA)
            if dmas and i % 2 == 1:
                dmas.pop(0)()
            if ph.get("valu") is not None:
                emit_items(ph["valu"], ph.get("per", 5))
            if j == 7 and ph.get("after"):
                ph["after"]()
        while dmas:
            dmas.pop(0)()

    def iter_dmas(par):
        L = []
        for jj in range(4):
            def fk(jj=jj):
                lab = a.uid("AT_DK")
                a("s_cmp_eq_u32 s%d, 0" % A_DOK)
                a("s_cbranch_scc1 %s" % lab)
                dma_piece(False, jj, par, A_KG)
                a.label(lab)
            L.append(fk)
        for jj in range(4):
            def fv(jj=jj):
                lab = a.uid("AT_DV")
                a("s_cmp_eq_u32 s%d, 0" % A_DOV)
                a("s_cbranch_scc1 %s" % lab)
                dma_piece(True, jj, par ^ 1, A_VG)
                a.label(lab)
            L.append(fv)
        return L

    def dma_targets(tail):
        a("s_add_u32 s%d, s%d, 1" % (A_T0, A_IT))
        a("s_mov_b32 s%d, 1" % A_DOV)
        a("s_cmp_le_u32 s%d, s%d" % (A_T0, A_QB))
        lab = a.uid("AT_VT")
        a("s_cbranch_scc1 %s" % lab)
        a("s_mov_b32 s%d, 0" % A_T0)
        a("s_cmp_eq_u32 s%d, 0" % A_PHASE)
        a("s_cselect_b32 s%d, 1, 0" % A_DOV)
        a.label(lab)
        a("s_lshl_b32 s%d, s%d, 20" % (A_T0, A_T0))
        a("s_add_u32 s%d, s%d, s%d" % (A_VG, A_T0, A_BASE))
        if tail:
            a("s_mov_b32 s%d, 0" % A_DOK)
            return
        a("s_add_u32 s%d, s%d, 2" % (A_T0, A_IT))
        a("s_mov_b32 s%d, 1" % A_DOK)
        a("s_cmp_le_u32 s%d, s%d" % (A_T0, A_QB))
        lab = a.uid("AT_KT")
        a("s_cbranch_scc1 %s" % lab)
        a("s_mov_b32 s%d, 0" % A_T0)
        a("s_cmp_eq_u32 s%d, 0" % A_PHASE)
        a("s_cselect_b32 s%d, 1, 0" % A_DOK)
        a.label(lab)
        a("s_lshl_b32 s%d, s%d, 20" % (A_T0, A_T0))
        a("s_add_u32 s%d, s%d, s%d" % (A_KG, A_T0, A_BASE))

    def diag_mask_if_next(par_next):
        lab = a.uid("AT_MK")
        a("s_add_u32 s%d, s%d, 1" % (A_T0, A_IT))
        a("s_cmp_eq_u32 s%d, s%d" % (A_T0, A_QB))
        a("s_cbranch_scc0 %s" % lab)
        mask_block(par_next)
        a.label(lab)

    def steady(par):
        p, n_ = par, par ^ 1
        dma_targets(False)
        a("s_waitcnt vmcnt(0)")
        a("s_barrier")
        smA_cur = make_sm(SAB[(p, 0)], PFA)[SM_SPLIT:]
        smB = make_sm(SAB[(p, 1)], PFB)
        smA_next = make_sm(SAB[(n_, 0)], PFA)[:SM_SPLIT]
        half = (len(smB) + 1) // 2
        smB1, smB2 = smB[:half], smB[half:]
        phases = [
            dict(kind="qk", kb=0, kpar=n_, sb=SAB[(n_, 0)], valu=smA_cur, per=5,
                 after=lambda: (emit_items(smA_cur, 1000), rescale_point())),
            dict(kind="pv", ks0=0, vpar=p, pf=PFA, valu=smB1, per=5, after=lambda: emit_items(smB1, 1000)),
            dict(kind="qk", kb=1, kpar=n_, sb=SAB[(n_, 1)], valu=smB2, per=5,
                 after=lambda: (emit_items(smB2, 1000), rescale_point(), diag_mask_if_next(n_))),
            dict(kind="pv", ks0=2, vpar=p, pf=PFB, valu=smA_next, per=5, after=lambda: emit_items(smA_next, 1000)),
        ]
        run_phases(phases, iter_dmas(p), pre_items=smA_cur)

    def tail(par):
        p = par
        dma_targets(True)
        a("s_waitcnt vmcnt(0)")
        a("s_barrier")
        smA_cur = make_sm(SAB[(p, 0)], PFA)[SM_SPLIT:]
        emit_items(smA_cur, 1000)
        rescale_point()
        smB = make_sm(SAB[(p, 1)], PFB)
        phases = [
            dict(kind="pv", ks0=0, vpar=p, pf=PFA, valu=smB, per=10,
                 after=lambda: (emit_items(smB, 1000), rescale_point())),
            dict(kind="pv", ks0=2, vpar=p, pf=PFB),
        ]
        dm = [f for f in iter_dmas(p)[4:]]
        run_phases(phases, dm)

    def prime(par):
        a("s_waitcnt vmcnt(0)")
        a("s_barrier")
        lab = a.uid("AT_PK")
        a("s_cmp_eq_u32 s%d, 0" % A_QB)
        a("s_cbranch_scc1 %s" % lab)
        a("s_add_u32 s%d, s%d, %d" % (A_KG, A_BASE, BS_Q))
        for jj in range(4):
            dma_piece(False, jj, par ^ 1, A_KG)
        a.label(lab)
        phases = [
            dict(kind="qk", kb=0, kpar=par, sb=SAB[(par, 0)]),
            dict(kind="qk", kb=1, kpar=par, sb=SAB[(par, 1)]),
        ]
        run_phases(phases, [])
        lab = a.uid("AT_PM")
        a("s_cmp_eq_u32 s%d, 0" % A_QB)
        a("s_cbranch_scc0 %s" % lab)
        mask_block(par)
        a.label(lab)
        emit_items(make_sm(SAB[(par, 0)], PFA)[:SM_SPLIT], 1000)

    a.label("AT_QBLOCK")
    a("s_sub_u32 s%d, 15, s%d" % (A_T0, A_P))
    a("s_cmp_eq_u32 s%d, 0" % A_PHASE)
    a("s_cselect_b32 s%d, s%d, s%d" % (A_QB, A_T0, A_P))
    a("s_lshl_b32 s%d, s%d, 20" % (A_T0, A_QB))
    a("s_lshl_b32 s%d, s%d, 15" % (A_T1, A_HD))
    a("s_add_u32 s%d, s%d, s%d" % (A_T0, A_T0, A_T1))
    for s in range(8):
        a("s_add_u32 s%d, s%d, %d" % (A_T1, A_T0, s * 4096))
        a("buffer_load_dwordx4 v[%d:%d], v%d, s[%d:%d], s%d offen" % (
            FQ + 4 * s, FQ + 4 * s + 3, VQO, ASRD_Q, ASRD_Q + 3, A_T1))
    for r in range(64):
        a("v_mov_b32 v%d, 0" % (OA + r))
    a("v_mov_b32 v%d, 0xf149f2ca" % VM)
    a("v_mov_b32 v%d, 0" % VL)
    a("s_mov_b32 s%d, 0" % A_IT)
    a("s_cmp_eq_u32 s%d, 0" % A_PAR)
    a("s_cbranch_scc0 AT_PRIME1")
    prime(0)
    a("s_branch AT_ITER")
    a.label("AT_PRIME1")
    prime(1)
    a.label("AT_ITER")
    a("s_cmp_lt_u32 s%d, s%d" % (A_IT, A_QB))
    a("s_cbranch_scc0 AT_TAIL")
    a("s_cmp_eq_u32 s%d, 0" % A_PAR)
    a("s_cbranch_scc0 AT_ST1")
    steady(0)
    a("s_branch AT_STN")
    a.label("AT_ST1")
    steady(1)
    a.label("AT_STN")
    a("s_xor_b32 s%d, s%d, 1" % (A_PAR, A_PAR))
    a("s_add_u32 s%d, s%d, 1" % (A_IT, A_IT))
    a("s_branch AT_ITER")
    a.label("AT_TAIL")
    a("s_cmp_eq_u32 s%d, 0" % A_PAR)
    a("s_cbranch_scc0 AT_TL1")
    tail(0)
    a("s_branch AT_TLN")
    a.label("AT_TL1")
    tail(1)
    a.label("AT_TLN")

    a("v_mov_b32 v%d, v%d" % (T, VL))
    a("v_permlane32_swap_b32 v%d, v%d" % (VL, T))
    a("v_add_f32 v%d, v%d, v%d" % (VL, VL, T))
    a("s_barrier")
    a("s_mul_i32 s%d, s%d, %d" % (A_T0, A_PAR, STG_BYTES))
    a("s_lshr_b32 s%d, s%d, 1" % (A_T1, A_WQ))
    a("s_mul_i32 s%d, s%d, %d" % (A_T1, A_T1, HALF_BYTES))
    a("s_add_u32 s%d, s%d, s%d" % (A_T0, A_T0, A_T1))
    a("s_and_b32 s%d, s%d, 1" % (A_T1, A_WQ))
    a("s_lshl_b32 s%d, s%d, 14" % (A_T1, A_T1))
    a("s_add_u32 s%d, s%d, s%d" % (A_T0, A_T0, A_T1))
    a("v_lshlrev_b32 v%d, 4, v1" % T)
    a("v_add_u32 v%d, s%d, v%d" % (T, A_T0, T))
    a("s_lshl_b32 s%d, s%d, 9" % (A_T1, A_WQ))
    a("s_add_u32 s%d, s%d, %d" % (A_T1, A_T1, AT_LDS_ML))
    a("v_lshlrev_b32 v%d, 3, v1" % (T + 1))
    a("v_add_u32 v%d, s%d, v%d" % (T + 1, A_T1, T + 1))
    a("s_cmp_eq_u32 s%d, 0" % A_HF)
    a("s_cbranch_scc1 AT_MERGE_WAIT")
    for g in range(16):
        a("ds_write_b128 v%d, v[%d:%d] offset:%d" % (T, OA + 4 * g, OA + 4 * g + 3, g * 1024))
    a("v_mov_b32 v%d, v%d" % (VX, VM))
    a("v_mov_b32 v%d, v%d" % (VX + 1, VL))
    a("ds_write_b64 v%d, v[%d:%d]" % (T + 1, VX, VX + 1))
    a("s_waitcnt lgkmcnt(0)")
    a.label("AT_MERGE_WAIT")
    a("s_barrier")
    a("s_cmp_eq_u32 s%d, 0" % A_HF)
    a("s_cbranch_scc0 AT_MERGE_DONE")
    PO = 64
    for g in range(16):
        a("ds_read_b128 v[%d:%d], v%d offset:%d" % (PO + 4 * g, PO + 4 * g + 3, T, g * 1024))
    a("ds_read_b64 v[%d:%d], v%d" % (VX, VX + 1, T + 1))
    a("s_waitcnt lgkmcnt(0)")
    a("v_max_f32 v%d, v%d, v%d" % (T + 4, VM, VX))
    a("v_sub_f32 v%d, v%d, v%d" % (T + 5, VM, T + 4))
    a("v_sub_f32 v%d, v%d, v%d" % (T + 6, VX, T + 4))
    a("v_mul_f32 v%d, s%d, v%d" % (T + 5, A_C, T + 5))
    a("v_mul_f32 v%d, s%d, v%d" % (T + 6, A_C, T + 6))
    a("v_exp_f32 v%d, v%d" % (T + 5, T + 5))
    a("v_exp_f32 v%d, v%d" % (T + 6, T + 6))
    a("v_mul_f32 v%d, v%d, v%d" % (T + 7, VL, T + 5))
    a("v_fma_f32 v%d, v%d, v%d, v%d" % (T + 7, VX + 1, T + 6, T + 7))
    a("v_rcp_f32 v%d, v%d" % (T + 7, T + 7))
    a("v_mul_f32 v%d, v%d, v%d" % (T + 5, T + 5, T + 7))
    a("v_mul_f32 v%d, v%d, v%d" % (T + 6, T + 6, T + 7))
    for r in range(64):
        a("v_mul_f32 v%d, v%d, v%d" % (OA + r, OA + r, T + 5))
    for r in range(64):
        a("v_fma_f32 v%d, v%d, v%d, v%d" % (OA + r, PO + r, T + 6, OA + r))
    a("s_mul_i32 s%d, s%d, %d" % (A_T1, A_QB, BS_Y))
    a("s_lshl_b32 s%d, s%d, 15" % (A_T2, A_HD))
    a("s_add_u32 s%d, s%d, s%d" % (A_T1, A_T1, A_T2))
    k = 0
    for db in range(4):
        for qp in range(2):
            dq = KR + 4 * (k & 3)
            for qi in range(2):
                r0 = OA + 16 * db + 4 * (2 * qp + qi)
                a("v_cvt_pk_bf16_f32 v%d, v%d, v%d" % (dq + 2 * qi, r0, r0 + 1))
                a("v_cvt_pk_bf16_f32 v%d, v%d, v%d" % (dq + 2 * qi + 1, r0 + 2, r0 + 3))
            a("v_permlane32_swap_b32 v%d, v%d" % (dq, dq + 2))
            a("v_permlane32_swap_b32 v%d, v%d" % (dq + 1, dq + 3))
            a("s_add_u32 s%d, s%d, %d" % (A_T2, A_T1, (4 * db + 2 * qp) * 2048))
            a("buffer_store_dwordx4 v[%d:%d], v%d, s[%d:%d], s%d offen" % (dq, dq + 3, VQO, ASRD_Y, ASRD_Y + 3, A_T2))
            k += 1
    a.label("AT_MERGE_DONE")
    a("s_xor_b32 s%d, s%d, 1" % (A_PAR, A_PAR))
    a("s_add_u32 s%d, s%d, 1" % (A_PHASE, A_PHASE))
    a("s_cmp_lt_u32 s%d, 2" % A_PHASE)
    a("s_cbranch_scc1 AT_QBLOCK")
    if CLK_STAMP:
        a("s_cmp_lg_u32 s2, 0")
        a("s_cbranch_scc1 AT_EXIT")
        a("s_cmp_lg_u32 s%d, 0" % A_W)
        a("s_cbranch_scc1 AT_EXIT")
        a("s_memtime s[64:65]")
        a("s_memrealtime s[66:67]")
        a("s_load_dwordx2 s[68:69], s[0:1], %d" % KA_DBG)
        a("s_waitcnt lgkmcnt(0)")
        a("s_sub_u32 s64, s64, s60")
        a("s_sub_u32 s66, s66, s62")
        srd(a, 72, 68, 256)
        a("v_mov_b32 v2, s64")
        a("v_mov_b32 v3, s66")
        a("v_mov_b32 v4, 0")
        a("buffer_store_dwordx2 v[2:3], v4, s[72:75], 0 offen")
    a.label("AT_EXIT")
    a("s_endpgm")
    return name, 256, AT_LDS, 256


GC_SPLIT = 4
GC_STAGES = KC // 32
GC_PER = (GC_STAGES + GC_SPLIT - 1) // GC_SPLIT
SZ_P = GC_SPLIT * S * M * 4


def gen_gemm_c(a):
    name = "gemmc_kernel"
    c = GemmCfg(2)
    kernel_header(a, name)
    NWG = 256
    a("s_cmp_ge_u32 s2, %d" % NWG)
    a("s_cbranch_scc1 GC_EXIT")
    a("s_and_b32 s%d, s2, 7" % S_T0)
    a("s_lshr_b32 s%d, s2, 3" % S_T1)
    a("s_lshl_b32 s%d, s%d, 1" % (S_MT, S_T0))
    a("s_and_b32 s%d, s%d, 1" % (S_T0, S_T1))
    a("s_add_u32 s%d, s%d, s%d" % (S_MT, S_MT, S_T0))
    a("s_lshr_b32 s%d, s%d, 1" % (S_NT, S_T1))
    a("s_and_b32 s%d, s%d, 3" % (S_NT, S_NT))
    a("s_lshr_b32 s%d, s%d, 3" % (S_FLAG, S_T1))
    P = S_P
    a("s_load_dwordx2 s[%d:%d], s[0:1], %d" % (P, P + 1, KA_WO))
    a("s_load_dwordx2 s[%d:%d], s[0:1], %d" % (P + 2, P + 3, KA_W2))
    a("s_load_dwordx2 s[%d:%d], s[0:1], %d" % (P + 4, P + 5, KA_WS))
    a("v_lshrrev_b32 v1, 6, v0")
    a("s_nop 0")
    a("v_readfirstlane_b32 s%d, v1" % S_W)
    a("s_nop 3")
    a("s_lshr_b32 s%d, s%d, 1" % (S_WN, S_W))
    a("s_and_b32 s%d, s%d, 1" % (S_WM, S_W))
    a("s_waitcnt lgkmcnt(0)")
    a("s_mov_b32 s%d, 1024" % S_WSTR)
    add64(a, P + 6, P + 4, WS_Y)
    srd(a, SRD_X, P + 6, SZ_Y)
    add64(a, P + 6, P + 4, WS_P)
    srd(a, SRD_O, P + 6, SZ_P)
    a("s_mul_i32 s%d, s%d, %d" % (S_PFG, S_FLAG, GC_PER))
    a("s_mov_b32 s%d, %d" % (S_NST, GC_PER))
    a("s_cmp_eq_u32 s%d, %d" % (S_FLAG, GC_SPLIT - 1))
    a("s_cselect_b32 s%d, %d, s%d" % (S_NST, GC_STAGES - (GC_SPLIT - 1) * GC_PER, S_NST))
    a("s_cmp_ge_u32 s%d, 128" % S_PFG)
    a("s_cbranch_scc1 GC_W2")
    srd(a, SRD_W, P, HD * M * 2)
    a("s_mov_b32 s%d, s%d" % (S_T1, S_PFG))
    a("s_branch GC_WSET")
    a.label("GC_W2")
    srd(a, SRD_W, P + 2, F * M * 2)
    a("s_sub_u32 s%d, s%d, 128" % (S_T1, S_PFG))
    a.label("GC_WSET")
    a("s_lshl_b32 s%d, s%d, 15" % (S_T1, S_T1))
    a("s_lshl_b32 s%d, s%d, 8" % (S_T0, S_NT))
    a("s_add_u32 s%d, s%d, s%d" % (S_T1, S_T1, S_T0))
    for j in range(c.NWPW):
        a("s_add_u32 s%d, s%d, %d" % (S_T0, S_W, 4 * j))
        a("s_mul_i32 s%d, s%d, %d" % (S_T0, S_T0, c.RPI * 1024))
        a("s_add_u32 s%d, s%d, s%d" % (S_WOFF + j, S_T0, S_T1))
    a("s_mov_b32 s%d, %d" % (S_WINC, 32 * 1024))
    for j in range(c.NXPW):
        a("s_mul_i32 s%d, s%d, %d" % (S_T0, S_MT, BS_Y))
        a("s_lshl_b32 s%d, s%d, 11" % (S_T1, S_W))
        a("s_add_u32 s%d, s%d, s%d" % (S_T0, S_T0, S_T1))
        a("s_lshl_b32 s%d, s%d, 13" % (S_T1, S_PFG))
        a("s_add_u32 s%d, s%d, s%d" % (S_T0, S_T0, S_T1))
        a("s_add_u32 s%d, s%d, %d" % (S_XOFF + j, S_T0, 1024 * j))
    gemm_lane_setup(a, c)
    hook_n = [0]

    def hook():
        hook_n[0] += 1
        lab = "GC_NOSW_%d" % hook_n[0]
        a("s_add_u32 s%d, s%d, 1" % (S_PFG, S_PFG))
        a("s_cmp_eq_u32 s%d, 128" % S_PFG)
        a("s_cbranch_scc0 %s" % lab)
        srd(a, SRD_W, P + 2, F * M * 2)
        for j in range(c.NWPW):
            a("s_sub_u32 s%d, s%d, %d" % (S_WOFF + j, S_WOFF + j, 128 * 32 * 1024))
        a.label(lab)

    gemm_mainloop(a, c, "gc", hook)
    a("s_lshl_b32 s%d, s%d, 22" % (S_T0, S_FLAG))
    a("s_lshl_b32 s%d, s%d, 2" % (S_T1, S_MT))
    a("s_add_u32 s%d, s%d, s%d" % (S_T1, S_T1, S_NT))
    a("s_lshl_b32 s%d, s%d, 16" % (S_T1, S_T1))
    a("s_add_u32 s%d, s%d, s%d" % (S_T0, S_T0, S_T1))
    a("s_lshl_b32 s%d, s%d, 14" % (S_T1, S_W))
    a("s_add_u32 s%d, s%d, s%d" % (S_T0, S_T0, S_T1))
    a("v_lshlrev_b32 v%d, 4, v1" % c.V_T)
    for blk in range(4):
        for qd in range(4):
            r = c.ACC + blk * 16 + qd * 4
            a("buffer_store_dwordx4 v[%d:%d], v%d, s[%d:%d], s%d offen offset:%d" % (
                r, r + 3, c.V_T, SRD_O, SRD_O + 3, S_T0, ((blk * 4 + qd) * 1024) % 4096))
            if (blk * 4 + qd) % 4 == 3:
                a("s_add_u32 s%d, s%d, 4096" % (S_T0, S_T0))
    a.label("GC_EXIT")
    a("s_endpgm")
    return name, c.ACC + c.NACC + 8, c.NSLOT * c.SLOT, NWG


def gen_reduce(a):
    name = "reduce_kernel"
    kernel_header(a, name)
    NWG = 1024
    a("s_cmp_ge_u32 s2, %d" % NWG)
    a("s_cbranch_scc1 RD_EXIT")
    a("s_load_dwordx2 s[4:5], s[0:1], %d" % KA_X)
    a("s_load_dwordx2 s[6:7], s[0:1], %d" % KA_B2)
    a("s_load_dwordx2 s[24:25], s[0:1], %d" % KA_OUT)
    a("s_load_dwordx2 s[26:27], s[0:1], %d" % KA_WS)
    a("s_lshl_b32 s3, s2, 8")
    a("v_add_u32 v1, s3, v0")
    a("v_lshlrev_b32 v2, 4, v1")
    a("v_and_b32 v3, 63, v1")
    a("v_bfe_u32 v4, v1, 6, 2")
    a("v_bfe_u32 v5, v1, 8, 2")
    a("v_bfe_u32 v6, v1, 10, 2")
    a("v_lshrrev_b32 v7, 12, v1")
    a("v_lshrrev_b32 v8, 2, v7")
    a("v_lshlrev_b32 v8, 7, v8")
    a("v_and_b32 v9, 1, v6")
    a("v_lshl_add_u32 v8, v9, 6, v8")
    a("v_and_b32 v9, 1, v5")
    a("v_lshl_add_u32 v8, v9, 5, v8")
    a("v_and_b32 v9, 31, v3")
    a("v_add_u32 v8, v8, v9")
    a("v_and_b32 v9, 3, v7")
    a("v_lshlrev_b32 v9, 7, v9")
    a("v_lshrrev_b32 v10, 1, v6")
    a("v_lshl_add_u32 v9, v10, 6, v9")
    a("v_lshrrev_b32 v10, 1, v5")
    a("v_lshl_add_u32 v9, v10, 5, v9")
    a("v_lshl_add_u32 v9, v4, 3, v9")
    a("v_lshrrev_b32 v10, 5, v3")
    a("v_lshl_add_u32 v9, v10, 2, v9")
    a("v_lshl_add_u32 v10, v8, 9, v9")
    a("v_lshlrev_b32 v10, 1, v10")
    a("v_lshlrev_b32 v11, 1, v9")
    a("s_waitcnt lgkmcnt(0)")
    srd(a, 8, 4, S * M * 2)
    srd(a, 12, 6, M * 2)
    srd(a, 16, 24, S * M * 2)
    add64(a, 26, 26, WS_P)
    srd(a, 20, 26, SZ_P)
    for sp in range(GC_SPLIT):
        a("s_mov_b32 s28, %d" % (sp * S * M * 4))
        a("buffer_load_dwordx4 v[%d:%d], v2, s[20:23], s28 offen" % (12 + 4 * sp, 15 + 4 * sp))
    a("buffer_load_dwordx2 v[28:29], v10, s[8:11], 0 offen")
    a("buffer_load_dwordx2 v[30:31], v11, s[12:15], 0 offen")
    a("s_waitcnt vmcnt(0)")
    for e in range(4):
        a("v_add_f32 v%d, v%d, v%d" % (12 + e, 12 + e, 16 + e))
        a("v_add_f32 v%d, v%d, v%d" % (20 + e, 20 + e, 24 + e))
    for e in range(4):
        a("v_add_f32 v%d, v%d, v%d" % (12 + e, 12 + e, 20 + e))
    a("v_lshlrev_b32 v16, 16, v28")
    a("v_and_b32 v17, 0xffff0000, v28")
    a("v_lshlrev_b32 v18, 16, v29")
    a("v_and_b32 v19, 0xffff0000, v29")
    a("v_lshlrev_b32 v20, 16, v30")
    a("v_and_b32 v21, 0xffff0000, v30")
    a("v_lshlrev_b32 v22, 16, v31")
    a("v_and_b32 v23, 0xffff0000, v31")
    for e in range(4):
        a("v_add_f32 v%d, v%d, v%d" % (12 + e, 12 + e, 20 + e))
    for e in range(4):
        a("v_add_f32 v%d, v%d, v%d" % (12 + e, 12 + e, 16 + e))
    a("v_cvt_pk_bf16_f32 v12, v12, v13")
    a("v_cvt_pk_bf16_f32 v13, v14, v15")
    a("buffer_store_dwordx2 v[12:13], v10, s[16:19], 0 offen")
    a.label("RD_EXIT")
    a("s_endpgm")
    return name, 32, NWG


def build(out_path):
    a = Asm()
    descs, launches = [], []
    n, v, nwg = gen_ln(a)
    descs.append(kernel_desc(n, v))
    launches.append("; @launch kernel=%s grid=(%d,1,1) block=(256,1,1) lds=0" % (n, nwg))
    n, v, lds, nwg = gen_gemm_a(a)
    descs.append(kernel_desc(n, v))
    launches.append("; @launch kernel=%s grid=(%d,1,1) block=(256,1,1) lds=%d" % (n, nwg, lds))
    n, v, lds, nwg = gen_attn(a)
    descs.append(kernel_desc(n, v))
    launches.append("; @launch kernel=%s grid=(%d,1,1) block=(512,1,1) lds=%d" % (n, nwg, lds))
    n, v, lds, nwg = gen_gemm_c(a)
    descs.append(kernel_desc(n, v))
    launches.append("; @launch kernel=%s grid=(%d,1,1) block=(256,1,1) lds=%d" % (n, nwg, lds))
    n, v, nwg = gen_reduce(a)
    descs.append(kernel_desc(n, v))
    launches.append("; @launch kernel=%s grid=(%d,1,1) block=(256,1,1) lds=0" % (n, nwg))
    hdr = open("parallel_sum__compressed_kv_cla__dense_activation_gelu__prompt.s.ref").read()
    cmt = [ln for ln in hdr.splitlines() if ln.startswith(";") and "@launch" not in ln and "Override" not in ln and "grid=ceil" not in ln]
    txt = "\n".join(cmt) + "\n" + "\n".join(launches) + "\n"
    txt += '.amdgcn_target "amdgcn-amd-amdhsa--gfx950"\n.text\n' + a.text()
    txt += '.section .rodata,"a"\n' + "".join(descs)
    open(out_path, "w").write(txt)


if __name__ == "__main__":
    build(sys.argv[1] if len(sys.argv) > 1 else "k.s")
```

```python
import sys, math, os
sys.path.insert(0, "dev")
from asmlib import *

S, M, H, D, F = 2048, 512, 32, 128, 1376
HD = H * D
KC = HD + F
TB = 128
GR = TB * 16
YCH = 704

KA_X, KA_CKV, KA_WQ, KA_WUK, KA_WUV, KA_WO, KA_BX, KA_W1, KA_B1, KA_W2, KA_B2, KA_OUT, KA_DBG, KA_WS = \
    [8 * i for i in range(14)]

MBy = 1 << 20
WS_XN = 0
WS_CK = 2 * MBy
WS_Q = 4 * MBy
WS_K = 20 * MBy
WS_V = 36 * MBy
WS_Y = 52 * MBy
WS_P = 80 * MBy
BS_X = 64 * GR
BS_Q = 512 * GR
BS_Y = YCH * GR
SZ_XN = 16 * BS_X
SZ_QKV = 16 * BS_Q
SZ_Y = 16 * BS_Y
LOG2E = 1.4426950408889634

EXP = os.environ.get("EXP", "")
ST_FLAGS = os.environ.get("ST_FLAGS", "")


class LdsQueue:
    def __init__(self, a):
        self.a = a
        self.n_issued = 0
        self.done_upto = -1

    def issue(self):
        self.n_issued += 1
        return self.n_issued - 1

    def need(self, idx):
        if idx <= self.done_upto:
            return
        n = min(self.n_issued - 1 - idx, 15)
        self.a("s_waitcnt lgkmcnt(%d)" % n)
        self.done_upto = self.n_issued - 1 - n


def gen_ln(a):
    name = "ln_kernel"
    kernel_header(a, name)
    NROW = 1024
    NPF = 8 * 28
    NWG = NROW + NPF
    a("s_cmp_ge_u32 s2, %d" % NWG)
    a("s_cbranch_scc1 LN_EXIT")
    a("s_cmp_ge_u32 s2, %d" % NROW)
    a("s_cbranch_scc1 LN_PF")
    a("s_load_dwordx2 s[4:5], s[0:1], %d" % KA_X)
    a("s_load_dwordx2 s[6:7], s[0:1], %d" % KA_WS)
    a("s_load_dwordx2 s[16:17], s[0:1], %d" % KA_CKV)
    a("v_lshrrev_b32 v1, 6, v0")
    a("v_and_b32 v2, 63, v0")
    a("s_and_b32 s3, s2, 511")
    a("s_lshl_b32 s3, s3, 2")
    a("v_add_u32 v1, s3, v1")
    a("v_lshlrev_b32 v3, 10, v1")
    a("v_lshl_add_u32 v3, v2, 4, v3")
    a("v_lshrrev_b32 v20, 7, v1")
    a("v_lshlrev_b32 v20, 17, v20")
    a("v_and_b32 v21, 127, v1")
    a("v_lshl_add_u32 v21, v2, 7, v21")
    a("v_lshl_add_u32 v20, v21, 4, v20")
    a("s_waitcnt lgkmcnt(0)")
    a("s_cmp_ge_u32 s2, 512")
    a("s_cbranch_scc1 LN_COPY")
    srd(a, 8, 4, S * M * 2)
    add64(a, 6, 6, WS_XN)
    srd(a, 12, 6, SZ_XN)
    a("buffer_load_dwordx4 v[4:7], v3, s[8:11], 0 offen")
    a("s_waitcnt vmcnt(0)")
    for d in range(4):
        a("v_lshlrev_b32 v%d, 16, v%d" % (8 + 2 * d, 4 + d))
        a("v_and_b32 v%d, 0xffff0000, v%d" % (9 + 2 * d, 4 + d))

    def tree_sum(dst, regs):
        a("v_add_f32 v%d, v%d, v%d" % (dst, regs[0], regs[1]))
        for r in regs[2:]:
            a("v_add_f32 v%d, v%d, v%d" % (dst, dst, r))

    def wave_reduce(v, sdst):
        for sh in (1, 2, 4, 8):
            a("s_nop 1")
            a("v_add_f32_dpp v%d, v%d, v%d row_shr:%d row_mask:0xf bank_mask:0xf bound_ctrl:0" % (v, v, v, sh))
        a("s_nop 1")
        a("v_add_f32_dpp v%d, v%d, v%d row_bcast:15 row_mask:0xa bank_mask:0xf" % (v, v, v))
        a("s_nop 1")
        a("v_add_f32_dpp v%d, v%d, v%d row_bcast:31 row_mask:0xc bank_mask:0xf" % (v, v, v))
        a("s_nop 1")
        a("v_readlane_b32 s%d, v%d, 63" % (sdst, v))
        a("s_nop 3")

    tree_sum(16, list(range(8, 16)))
    wave_reduce(16, 20)
    a("v_mov_b32 v17, s20")
    a("v_mul_f32 v17, 0x3b000000, v17")
    for i in range(8):
        a("v_sub_f32 v%d, v%d, v17" % (24 + i, 8 + i))
    for i in range(8):
        a("v_mul_f32 v%d, v%d, v%d" % (24 + i, 24 + i, 24 + i))
    tree_sum(18, list(range(24, 32)))
    wave_reduce(18, 21)
    a("v_mov_b32 v18, s21")
    a("v_mul_f32 v18, 0x3b000000, v18")

    def bfr(v):
        a("v_cvt_pk_bf16_f32 v%d, v%d, v%d" % (v, v, v))
        a("v_lshlrev_b32 v%d, 16, v%d" % (v, v))
    bfr(17)
    bfr(18)
    a("v_add_f32 v18, 0x3727c5ac, v18")
    bfr(18)
    a("v_sqrt_f32 v18, v18")
    a("s_nop 0")
    bfr(18)
    a("v_rcp_f32 v19, v18")
    for i in range(8):
        a("v_sub_f32 v%d, v%d, v17" % (24 + i, 8 + i))
    for i in range(0, 8, 2):
        a("v_cvt_pk_bf16_f32 v%d, v%d, v%d" % (32 + i // 2, 24 + i, 25 + i))
    for i in range(4):
        a("v_lshlrev_b32 v%d, 16, v%d" % (24 + 2 * i, 32 + i))
        a("v_and_b32 v%d, 0xffff0000, v%d" % (25 + 2 * i, 32 + i))
    for i in range(8):
        a("v_mul_f32 v%d, v%d, v19" % (36 + i, 24 + i))
    for i in range(8):
        a("v_fma_f32 v%d, -v%d, v18, v%d" % (44 + i, 36 + i, 24 + i))
    for i in range(8):
        a("v_fma_f32 v%d, v%d, v19, v%d" % (36 + i, 44 + i, 36 + i))
    for i in range(4):
        a("v_cvt_pk_bf16_f32 v%d, v%d, v%d" % (4 + i, 36 + 2 * i, 37 + 2 * i))
    a("buffer_store_dwordx4 v[4:7], v20, s[12:15], 0 offen")
    a("s_endpgm")
    a.label("LN_COPY")
    srd(a, 8, 16, S * M * 2)
    add64(a, 6, 6, WS_CK)
    srd(a, 12, 6, SZ_XN)
    a("buffer_load_dwordx4 v[4:7], v3, s[8:11], 0 offen")
    a("s_waitcnt vmcnt(0)")
    a("buffer_store_dwordx4 v[4:7], v20, s[12:15], 0 offen")
    a("s_endpgm")
    a.label("LN_PF")
    a("s_sub_u32 s3, s2, %d" % NROW)
    a("s_and_b32 s4, s3, 7")
    a("s_lshr_b32 s5, s3, 3")
    a("s_lshr_b32 s6, s5, 2")
    a("s_lshl_b32 s6, s6, 3")
    a("s_add_u32 s6, s6, s4")
    a("s_and_b32 s5, s5, 3")
    a("s_cmp_ge_u32 s6, 54")
    a("s_cbranch_scc1 LN_EXIT")
    a("s_load_dwordx2 s[8:9], s[0:1], %d" % KA_WQ)
    a("s_load_dwordx2 s[10:11], s[0:1], %d" % KA_WUK)
    a("s_load_dwordx2 s[12:13], s[0:1], %d" % KA_WUV)
    a("s_load_dwordx2 s[14:15], s[0:1], %d" % KA_W1)
    a("s_waitcnt lgkmcnt(0)")
    a("s_cmp_lt_u32 s6, 6")
    a("s_cbranch_scc1 LN_PF_FFN")
    a("s_sub_u32 s7, s6, 6")
    a("s_lshr_b32 s20, s7, 4")
    a("s_and_b32 s7, s7, 15")
    a("s_cmp_eq_u32 s20, 1")
    a("s_cselect_b32 s8, s10, s8")
    a("s_cselect_b32 s9, s11, s9")
    a("s_cmp_eq_u32 s20, 2")
    a("s_cselect_b32 s8, s12, s8")
    a("s_cselect_b32 s9, s13, s9")
    srd(a, 16, 8, M * HD * 2)
    a("s_mov_b32 s21, 8192")
    a("s_branch LN_PF_GO")
    a.label("LN_PF_FFN")
    srd(a, 16, 14, M * F * 2)
    a("s_mov_b32 s7, s6")
    a("s_mov_b32 s21, %d" % (F * 2))
    a.label("LN_PF_GO")
    a("s_lshl_b32 s22, s5, 7")
    a("v_lshrrev_b32 v1, 5, v0")
    a("v_add_u32 v1, s22, v1")
    a("v_mul_lo_u32 v1, v1, s21")
    a("v_and_b32 v2, 31, v0")
    a("v_lshl_add_u32 v1, v2, 4, v1")
    a("s_lshl_b32 s7, s7, 9")
    a("s_lshl_b32 s23, s21, 3")
    for i in range(16):
        a("buffer_load_dwordx4 v[%d:%d], v1, s[16:19], s7 offen" % (4 + 4 * (i % 8), 7 + 4 * (i % 8)))
        a("s_add_u32 s7, s7, s23")
    a.label("LN_EXIT")
    a("s_endpgm")
    return name, 64, NWG


class GemmCfg:
    def __init__(self, NB):
        self.NB = NB
        self.BN = 2 * 32 * NB
        self.BM = 128
        self.RB = self.BN * 2
        self.WBYTES = 32 * self.RB
        self.XBYTES = 4 * GR
        self.SLOT = self.WBYTES + self.XBYTES
        self.NSLOT = 3
        self.RPI = 1024 // self.RB
        self.NWI = self.WBYTES // 1024
        self.NXI = self.XBYTES // 1024
        self.NWPW = self.NWI // 4
        self.NXPW = self.NXI // 4
        self.ND = self.NWPW + self.NXPW
        self.V_AADDR = 2
        self.V_BADDR = 6
        self.V_DMAW = 8
        self.V_DMAX = 9
        self.V_T = 10
        self.FA = 16
        self.FB = self.FA + 2 * NB * 4
        self.ACC = 64
        self.NACC = NB * 2 * 16
        self.V_EP = self.ACC + self.NACC

    def acc(self, nb, mb):
        return self.ACC + (nb * 2 + mb) * 16

    def fa(self, s, nb):
        return self.FA + (s * self.NB + nb) * 4

    def fb(self, s, mb):
        return self.FB + (s * 2 + mb) * 4


S_W = 3
SRD_X, SRD_W, SRD_O, SRD_B = 8, 12, 16, 20
S_WOFF = 24
S_XOFF = 28
S_STAGE, S_NST, S_CUR, S_PF, S_WINC, S_DELTA, S_T0, S_T1, S_PFW, S_PFX, S_WSTR = 30, 31, 32, 33, 34, 35, 36, 37, 38, 39, 40
S_FLAG, S_MT, S_NT, S_OCH, S_OBS, S_WN, S_WM, S_PFG = 42, 43, 44, 45, 46, 47, 48, 49
S_P = 50


def gemm_lane_setup(a, c):
    T = c.V_T
    a("v_and_b32 v1, 63, v0")
    a("v_lshrrev_b32 v%d, 5, v1" % T)
    a("v_and_b32 v%d, 15, v1" % (T + 1))
    a("v_lshrrev_b32 v%d, 2, v%d" % (T + 2, T + 1))
    a("v_and_b32 v%d, 3, v%d" % (T + 3, T + 1))
    a("v_bfe_u32 v%d, v1, 4, 1" % (T + 4))
    a("v_lshl_add_u32 v%d, v%d, 3, v%d" % (T + 5, T, T + 2))
    a("v_mul_u32_u24 v%d, %d, v%d" % (T + 5, c.RB, T + 5))
    a("v_lshlrev_b32 v%d, 5, v%d" % (T + 4, T + 4))
    a("v_lshl_add_u32 v%d, v%d, 3, v%d" % (T + 4, T + 3, T + 4))
    a("v_add_u32 v%d, v%d, v%d" % (T + 5, T + 5, T + 4))
    a("s_mul_i32 s%d, s%d, %d" % (S_T0, S_WN, c.NB))
    for nb in range(c.NB):
        a("s_add_u32 s%d, s%d, %d" % (S_T1, S_T0, nb))
        a("v_xor_b32 v%d, s%d, v%d" % (c.V_AADDR + nb, S_T1, T + 2))
        a("v_lshl_add_u32 v%d, v%d, 6, v%d" % (c.V_AADDR + nb, c.V_AADDR + nb, T + 5))
    a("v_and_b32 v%d, 31, v1" % (T + 2))
    a("s_lshl_b32 s%d, s%d, 6" % (S_T0, S_WM))
    a("v_add_u32 v%d, s%d, v%d" % (T + 2, S_T0, T + 2))
    a("v_lshlrev_b32 v%d, 4, v%d" % (T + 2, T + 2))
    a("v_lshl_add_u32 v%d, v%d, 11, v%d" % (T + 2, T, T + 2))
    a("v_add_u32 v%d, %d, v%d" % (c.V_BADDR, c.WBYTES, T + 2))
    CR = c.RB // 16
    sh = int(math.log2(CR))
    a("v_lshrrev_b32 v%d, %d, v1" % (T, sh))
    a("v_and_b32 v%d, %d, v1" % (T + 1, CR - 1))
    a("v_lshrrev_b32 v%d, 2, v%d" % (T + 2, T + 1))
    if c.RPI == 2:
        a("s_and_b32 s%d, s%d, 1" % (S_T0, S_W))
        a("s_lshl_b32 s%d, s%d, 1" % (S_T0, S_T0))
        a("v_add_u32 v%d, s%d, v%d" % (T + 3, S_T0, T))
    else:
        a("v_mov_b32 v%d, v%d" % (T + 3, T))
    a("v_xor_b32 v%d, v%d, v%d" % (T + 2, T + 2, T + 3))
    a("v_and_b32 v%d, 3, v%d" % (T + 1, T + 1))
    a("v_lshlrev_b32 v%d, 4, v%d" % (T + 1, T + 1))
    a("v_lshl_add_u32 v%d, v%d, 6, v%d" % (T + 1, T + 2, T + 1))
    a("v_mul_lo_u32 v%d, v%d, s%d" % (T, T, S_WSTR))
    a("v_add_u32 v%d, v%d, v%d" % (c.V_DMAW, T, T + 1))
    a("v_lshlrev_b32 v%d, 4, v1" % c.V_DMAX)


def gemm_dma_piece(a, c, idx):
    if EXP == "nodma":
        return
    if idx < c.NWPW:
        j = idx
        a("s_add_u32 m0, s%d, %d" % (S_PFW, 4096 * j))
        a("s_nop 0")
        a("buffer_load_dwordx4 v%d, s[%d:%d], s%d offen lds" % (c.V_DMAW, SRD_W, SRD_W + 3, S_WOFF + j))
        a("s_add_u32 s%d, s%d, s%d" % (S_WOFF + j, S_WOFF + j, S_WINC))
    else:
        j = idx - c.NWPW
        a("s_add_u32 m0, s%d, %d" % (S_PFX, 1024 * j))
        a("s_nop 0")
        a("buffer_load_dwordx4 v%d, s[%d:%d], s%d offen lds" % (c.V_DMAX, SRD_X, SRD_X + 3, S_XOFF + j))
        a("s_add_u32 s%d, s%d, 8192" % (S_XOFF + j, S_XOFF + j))


def gemm_pf_advance(a, c):
    a("s_add_u32 s%d, s%d, %d" % (S_PF, S_PF, c.SLOT))
    a("s_cmp_eq_u32 s%d, %d" % (S_PF, c.NSLOT * c.SLOT))
    a("s_cselect_b32 s%d, 0, s%d" % (S_PF, S_PF))
    a("s_lshl_b32 s%d, s%d, 10" % (S_T0, S_W))
    a("s_add_u32 s%d, s%d, s%d" % (S_PFW, S_PF, S_T0))
    a("s_lshl_b32 s%d, s%d, 11" % (S_T0, S_W))
    a("s_add_u32 s%d, s%d, s%d" % (S_PFX, S_PF, S_T0))
    a("s_add_u32 s%d, s%d, %d" % (S_PFX, S_PFX, c.WBYTES))


def gemm_stage(a, c, issue, wait_n, hook=None):
    a("s_waitcnt vmcnt(%d)" % wait_n)
    a("s_barrier")
    q = LdsQueue(a)
    ra, rb = {}, {}
    for s in range(2):
        order = [("A", 0), ("B", 0), ("B", 1)] + [("A", nb) for nb in range(1, c.NB)]
        for kind, x in order:
            if EXP == "dmaonly":
                ra[(s, x)] = rb[(s, x)] = -1
                continue
            if kind == "A":
                f = c.fa(s, x)
                off = s * 16 * c.RB
                a("ds_read_b64_tr_b16 v[%d:%d], v%d offset:%d" % (f, f + 1, c.V_AADDR + x, off))
                q.issue()
                a("ds_read_b64_tr_b16 v[%d:%d], v%d offset:%d" % (f + 2, f + 3, c.V_AADDR + x, off + 4 * c.RB))
                ra[(s, x)] = q.issue()
            else:
                f = c.fb(s, x)
                a("ds_read_b128 v[%d:%d], v%d offset:%d" % (f, f + 3, c.V_BADDR, s * 4096 + x * 512))
                rb[(s, x)] = q.issue()
    a("s_add_u32 s%d, s%d, %d" % (S_T0, S_CUR, c.SLOT))
    a("s_cmp_eq_u32 s%d, %d" % (S_T0, c.NSLOT * c.SLOT))
    a("s_cselect_b32 s%d, 0, s%d" % (S_T0, S_T0))
    a("s_sub_u32 s%d, s%d, s%d" % (S_DELTA, S_T0, S_CUR))
    a("s_mov_b32 s%d, s%d" % (S_CUR, S_T0))
    for nb in range(c.NB):
        a("v_add_u32 v%d, s%d, v%d" % (c.V_AADDR + nb, S_DELTA, c.V_AADDR + nb))
    a("v_add_u32 v%d, s%d, v%d" % (c.V_BADDR, S_DELTA, c.V_BADDR))
    nm = 0
    pieces = list(range(c.ND)) if issue else []
    for s in range(2):
        for nb in range(c.NB):
            for mb in range(2):
                q.need(max(ra[(s, nb)], rb[(s, mb)]))
                acc = c.acc(nb, mb)
                if EXP in ("nomfma", "dmaonly"):
                    nm += 1
                    if pieces and nm % 2 == 1:
                        gemm_dma_piece(a, c, pieces.pop(0))
                    continue
                a("v_mfma_f32_32x32x16_bf16 v[%d:%d], v[%d:%d], v[%d:%d], v[%d:%d]" % (
                    acc, acc + 15, c.fa(s, nb), c.fa(s, nb) + 3, c.fb(s, mb), c.fb(s, mb) + 3, acc, acc + 15))
                nm += 1
                if pieces and nm % 2 == 1:
                    gemm_dma_piece(a, c, pieces.pop(0))
    while pieces:
        gemm_dma_piece(a, c, pieces.pop(0))
    if issue:
        gemm_pf_advance(a, c)
    if hook:
        hook()


def gemm_mainloop(a, c, tag, stage_hook=None):
    depth = c.NSLOT - 1
    a("s_mov_b32 s%d, 0" % S_CUR)
    a("s_mov_b32 s%d, %d" % (S_PF, (c.NSLOT - 1) * c.SLOT))
    gemm_pf_advance(a, c)
    for st in range(depth):
        for p in range(c.ND):
            gemm_dma_piece(a, c, p)
        gemm_pf_advance(a, c)
        if stage_hook:
            stage_hook()
    for r in range(c.NACC):
        a("v_mov_b32 v%d, 0" % (c.ACC + r))
    a("s_mov_b32 s%d, 0" % S_STAGE)
    a("s_sub_u32 s%d, s%d, %d" % (S_NST, S_NST, depth))
    a.label("L_%s_loop" % tag)
    gemm_stage(a, c, True, (depth - 1) * c.ND, stage_hook)
    a("s_add_u32 s%d, s%d, 1" % (S_STAGE, S_STAGE))
    a("s_cmp_lt_u32 s%d, s%d" % (S_STAGE, S_NST))
    a("s_cbranch_scc1 L_%s_loop" % tag)
    for k in range(depth - 1, -1, -1):
        gemm_stage(a, c, False, k * c.ND)
    a("s_waitcnt vmcnt(0)")
    a("s_nop 15")
    a("s_nop 7")


def gemm_store_granule(a, c, gelu):
    NB = c.NB
    T = c.V_T
    EP = c.V_EP
    a("v_and_b32 v%d, 31, v1" % T)
    a("v_lshlrev_b32 v%d, 4, v%d" % (T, T))
    a("v_lshrrev_b32 v%d, 5, v1" % (T + 1))
    a("v_lshl_add_u32 v%d, v%d, 11, v%d" % (T, T + 1, T))
    a("s_mul_i32 s%d, s%d, s%d" % (S_T0, S_MT, S_OBS))
    a("s_mul_i32 s%d, s%d, %d" % (S_T1, S_WN, 4 * NB))
    a("s_add_u32 s%d, s%d, s%d" % (S_T1, S_T1, S_OCH))
    a("s_lshl_b32 s%d, s%d, 11" % (S_T1, S_T1))
    a("s_add_u32 s%d, s%d, s%d" % (S_T0, S_T0, S_T1))
    a("s_lshl_b32 s%d, s%d, 10" % (S_T1, S_WM))
    a("s_add_u32 s%d, s%d, s%d" % (S_T0, S_T0, S_T1))
    if gelu:
        BR = EP + 16
        a("v_lshrrev_b32 v%d, 5, v1" % (T + 2))
        a("v_lshlrev_b32 v%d, 3, v%d" % (T + 2, T + 2))
        a("s_sub_u32 s%d, s%d, 512" % (S_T1, S_OCH))
        a("s_lshl_b32 s%d, s%d, 4" % (S_T1, S_T1))
        a("s_mul_i32 s%d, s%d, %d" % (S_DELTA, S_WN, NB * 64))
        a("s_add_u32 s%d, s%d, s%d" % (S_T1, S_T1, S_DELTA))
        for nb in range(NB):
            for qd in range(4):
                r = BR + (nb * 4 + qd) * 2
                a("buffer_load_dwordx2 v[%d:%d], v%d, s[%d:%d], s%d offen offset:%d" % (
                    r, r + 1, T + 2, SRD_B, SRD_B + 3, S_T1, nb * 64 + qd * 16))
        a("s_mov_b32 s%d, 0x%08x" % (S_DELTA, f32bits(-2.0 * 0.7978845608028654 * LOG2E * 0.044715)))
        a("v_mov_b32 v%d, 0x%08x" % (EP + 15, f32bits(-2.0 * 0.7978845608028654 * LOG2E)))
        a("s_waitcnt vmcnt(0)")
    k = 0
    for nb in range(NB):
        for mb in range(2):
            for qp in range(2):
                dq = EP + 4 + 4 * (k & 1) if True else 0
                for qi in range(2):
                    qd = 2 * qp + qi
                    r0 = c.acc(nb, mb) + 4 * qd
                    if gelu:
                        br = EP + 16 + (nb * 4 + qd) * 2
                        U = EP + 12
                        W0 = EP
                        a("v_lshlrev_b32 v%d, 16, v%d" % (U, br))
                        a("v_and_b32 v%d, 0xffff0000, v%d" % (U + 1, br))
                        a("v_lshlrev_b32 v%d, 16, v%d" % (U + 2, br + 1))
                        a("v_and_b32 v%d, 0xffff0000, v%d" % (W0 + 3, br + 1))
                        a("v_add_f32 v%d, v%d, v%d" % (r0, r0, U))
                        a("v_add_f32 v%d, v%d, v%d" % (r0 + 1, r0 + 1, U + 1))
                        a("v_add_f32 v%d, v%d, v%d" % (r0 + 2, r0 + 2, U + 2))
                        a("v_add_f32 v%d, v%d, v%d" % (r0 + 3, r0 + 3, W0 + 3))
                        for e in range(4):
                            a("v_mul_f32 v%d, v%d, v%d" % (W0 + e, r0 + e, r0 + e))
                        for e in range(4):
                            a("v_fma_f32 v%d, v%d, s%d, v%d" % (W0 + e, W0 + e, S_DELTA, EP + 15))
                        for e in range(4):
                            a("v_mul_f32 v%d, v%d, v%d" % (W0 + e, W0 + e, r0 + e))
                        for e in range(4):
                            a("v_exp_f32 v%d, v%d" % (W0 + e, W0 + e))
                        for e in range(4):
                            a("v_add_f32 v%d, 1.0, v%d" % (W0 + e, W0 + e))
                        for e in range(4):
                            a("v_rcp_f32 v%d, v%d" % (W0 + e, W0 + e))
                        for e in range(4):
                            a("v_mul_f32 v%d, v%d, v%d" % (r0 + e, r0 + e, W0 + e))
                    a("v_cvt_pk_bf16_f32 v%d, v%d, v%d" % (dq + 2 * qi, r0, r0 + 1))
                    a("v_cvt_pk_bf16_f32 v%d, v%d, v%d" % (dq + 2 * qi + 1, r0 + 2, r0 + 3))
                a("s_nop 1")
                a("v_permlane32_swap_b32 v%d, v%d" % (dq, dq + 2))
                a("v_permlane32_swap_b32 v%d, v%d" % (dq + 1, dq + 3))
                off = (nb * 4 + 2 * qp) * 2048 + mb * 512
                a("s_add_u32 s%d, s%d, %d" % (S_T1, S_T0, off))
                if EXP != "nostore":
                    a("buffer_store_dwordx4 v[%d:%d], v%d, s[%d:%d], s%d offen%s" % (dq, dq + 3, T, SRD_O, SRD_O + 3, S_T1, ST_FLAGS))
                k += 1


def gen_gemm_a(a):
    name = "gemma_kernel"
    c = GemmCfg(4)
    kernel_header(a, name)
    NWG = 8 * 16 * 7
    a("s_cmp_ge_u32 s2, %d" % NWG)
    a("s_cbranch_scc1 GA_EXIT")
    a("s_and_b32 s%d, s2, 7" % S_T0)
    a("s_lshr_b32 s%d, s2, 3" % S_T1)
    a("s_and_b32 s%d, s%d, 15" % (S_MT, S_T1))
    a("s_lshr_b32 s%d, s%d, 4" % (S_T1, S_T1))
    a("s_lshl_b32 s%d, s%d, 3" % (S_T1, S_T1))
    a("s_add_u32 s%d, s%d, s%d" % (S_NT, S_T1, S_T0))
    a("s_cmp_ge_u32 s%d, 54" % S_NT)
    a("s_cbranch_scc1 GA_EXIT")
    P = S_P
    a("s_load_dwordx2 s[%d:%d], s[0:1], %d" % (P + 2, P + 3, KA_WQ))
    a("s_load_dwordx2 s[%d:%d], s[0:1], %d" % (P + 4, P + 5, KA_WUK))
    a("s_load_dwordx2 s[%d:%d], s[0:1], %d" % (P + 6, P + 7, KA_WUV))
    a("s_load_dwordx2 s[%d:%d], s[0:1], %d" % (P + 8, P + 9, KA_W1))
    a("s_load_dwordx2 s[%d:%d], s[0:1], %d" % (P + 10, P + 11, KA_B1))
    a("s_load_dwordx2 s[%d:%d], s[0:1], %d" % (P + 12, P + 13, KA_WS))
    a("v_lshrrev_b32 v1, 6, v0")
    a("s_nop 0")
    a("v_readfirstlane_b32 s%d, v1" % S_W)
    a("s_nop 3")
    a("s_lshr_b32 s%d, s%d, 1" % (S_WN, S_W))
    a("s_and_b32 s%d, s%d, 1" % (S_WM, S_W))
    a("s_waitcnt lgkmcnt(0)")
    WS = P + 12
    srd(a, SRD_B, P + 10, F * 2)
    a("s_cmp_lt_u32 s%d, 6" % S_NT)
    a("s_cbranch_scc1 GA_FFN")
    a("s_sub_u32 s%d, s%d, 6" % (S_T0, S_NT))
    a("s_lshr_b32 s%d, s%d, 4" % (S_T1, S_T0))
    a("s_and_b32 s%d, s%d, 15" % (S_T0, S_T0))
    a("s_lshl_b32 s%d, s%d, 5" % (S_OCH, S_T0))
    a("s_mov_b32 s%d, 0" % S_FLAG)
    a("s_mov_b32 s%d, 8192" % S_WSTR)
    a("s_mov_b32 s%d, %d" % (S_OBS, BS_Q))
    a("s_cmp_eq_u32 s%d, 1" % S_T1)
    a("s_cselect_b32 s%d, s%d, s%d" % (P + 14, P + 4, P + 2))
    a("s_cselect_b32 s%d, s%d, s%d" % (P + 15, P + 5, P + 3))
    a("s_cmp_eq_u32 s%d, 2" % S_T1)
    a("s_cselect_b32 s%d, s%d, s%d" % (P + 14, P + 6, P + 14))
    a("s_cselect_b32 s%d, s%d, s%d" % (P + 15, P + 7, P + 15))
    srd(a, SRD_W, P + 14, M * HD * 2)
    a("s_cmp_eq_u32 s%d, 0" % S_T1)
    a("s_cselect_b32 s%d, %d, %d" % (S_DELTA, WS_XN, WS_CK))
    a("s_add_u32 s%d, s%d, s%d" % (P + 16, WS, S_DELTA))
    a("s_addc_u32 s%d, s%d, 0" % (P + 17, WS + 1))
    srd(a, SRD_X, P + 16, SZ_XN)
    a("s_mul_i32 s%d, s%d, %d" % (S_T1, S_T1, WS_K - WS_Q))
    a("s_add_u32 s%d, s%d, %d" % (S_T1, S_T1, WS_Q))
    a("s_add_u32 s%d, s%d, s%d" % (P + 18, WS, S_T1))
    a("s_addc_u32 s%d, s%d, 0" % (P + 19, WS + 1))
    srd(a, SRD_O, P + 18, SZ_QKV)
    a("s_lshl_b32 s%d, s%d, 9" % (S_T1, S_T0))
    a("s_branch GA_COMMON")
    a.label("GA_FFN")
    a("s_lshl_b32 s%d, s%d, 5" % (S_OCH, S_NT))
    a("s_add_u32 s%d, s%d, 512" % (S_OCH, S_OCH))
    a("s_mov_b32 s%d, 1" % S_FLAG)
    a("s_mov_b32 s%d, %d" % (S_WSTR, F * 2))
    a("s_mov_b32 s%d, %d" % (S_OBS, BS_Y))
    srd(a, SRD_W, P + 8, M * F * 2)
    add64(a, P + 16, WS, WS_XN)
    srd(a, SRD_X, P + 16, SZ_XN)
    add64(a, P + 18, WS, WS_Y)
    srd(a, SRD_O, P + 18, SZ_Y)
    a("s_lshl_b32 s%d, s%d, 9" % (S_T1, S_NT))
    a.label("GA_COMMON")
    for j in range(c.NWPW):
        a("s_add_u32 s%d, s%d, %d" % (S_T0, S_W, 4 * j))
        a("s_mul_i32 s%d, s%d, %d" % (S_T0, S_T0, c.RPI))
        a("s_mul_i32 s%d, s%d, s%d" % (S_T0, S_T0, S_WSTR))
        a("s_add_u32 s%d, s%d, s%d" % (S_WOFF + j, S_T0, S_T1))
    a("s_mul_i32 s%d, s%d, 32" % (S_WINC, S_WSTR))
    for j in range(c.NXPW):
        a("s_mul_i32 s%d, s%d, %d" % (S_T0, S_MT, BS_X))
        a("s_lshl_b32 s%d, s%d, 11" % (S_T1, S_W))
        a("s_add_u32 s%d, s%d, s%d" % (S_T0, S_T0, S_T1))
        a("s_add_u32 s%d, s%d, %d" % (S_XOFF + j, S_T0, 1024 * j))
    gemm_lane_setup(a, c)
    a("s_mov_b32 s%d, %d" % (S_NST, M // 32))
    gemm_mainloop(a, c, "ga")
    a("s_cmp_eq_u32 s%d, 1" % S_FLAG)
    a("s_cbranch_scc1 GA_EP_GELU")
    gemm_store_granule(a, c, False)
    a("s_endpgm")
    a.label("GA_EP_GELU")
    gemm_store_granule(a, c, True)
    a.label("GA_EXIT")
    a("s_endpgm")
    return name, 256, c.NSLOT * c.SLOT, NWG


SCALE_C = (D ** -0.5) * LOG2E
VPAD = 1088
KT_BYTES = 16 * 1024
VT_BYTES = 16 * VPAD
STG_BYTES = KT_BYTES + VT_BYTES
HALF_BYTES = 2 * STG_BYTES
AT_LDS_ML = 2 * HALF_BYTES
AT_LDS = AT_LDS_ML + 2048

A_W, A_HF, A_WQ, A_HD, A_P, A_QB, A_IT, A_PHASE = 3, 4, 5, 6, 7, 24, 25, 26
ASRD_Q, ASRD_K, ASRD_V, ASRD_Y = 8, 12, 16, 20
A_PAR, A_HB, A_BASE, A_C, A_T0, A_T1, A_T2, A_KG, A_VG, A_THR = 27, 28, 29, 30, 31, 32, 33, 34, 35, 38
A_MSK = 36
A_DOK, A_DOV = 39, 40
A_P0 = 42

VKA, VVA, VDM, VM, VL, VTHR, VNEG, VQO = 2, 3, 4, 5, 6, 7, 8, 9
PFA, PFB = 16, 24
FQ = 32
SAB = {(0, 0): 64, (0, 1): 80, (1, 0): 96, (1, 1): 112}
OA = 128
KR, VRG = 192, 208
VT = 224
VX = 248
ASTAMP = os.environ.get("ASTAMP", "")


def gen_attn(a):
    name = "attn_kernel"
    kernel_header(a, name)
    a("s_cmp_ge_u32 s2, 256")
    a("s_cbranch_scc1 AT_EXIT")
    CLK_STAMP = os.environ.get("CLK", "") == "1"
    if CLK_STAMP:
        a("s_memtime s[60:61]")
        a("s_memrealtime s[62:63]")
    a("s_load_dwordx2 s[%d:%d], s[0:1], %d" % (A_P0, A_P0 + 1, KA_WS))
    a("s_load_dwordx2 s[52:53], s[0:1], %d" % KA_WO)
    a("s_load_dwordx2 s[54:55], s[0:1], %d" % KA_W2)
    a("v_lshrrev_b32 v1, 6, v0")
    a("s_nop 0")
    a("v_readfirstlane_b32 s%d, v1" % A_W)
    a("v_and_b32 v1, 63, v0")
    a("s_nop 3")
    a("s_lshr_b32 s%d, s%d, 2" % (A_HF, A_W))
    a("s_and_b32 s%d, s%d, 3" % (A_WQ, A_W))
    a("s_and_b32 s%d, s2, 7" % A_T0)
    a("s_lshr_b32 s%d, s2, 3" % A_T1)
    a("s_and_b32 s%d, s%d, 3" % (A_HD, A_T1))
    a("s_lshl_b32 s%d, s%d, 3" % (A_HD, A_HD))
    a("s_add_u32 s%d, s%d, s%d" % (A_HD, A_HD, A_T0))
    a("s_lshr_b32 s%d, s%d, 2" % (A_P, A_T1))
    a("s_mov_b32 s%d, 0x%08x" % (A_C, f32bits(SCALE_C)))
    a("s_mov_b32 s%d, 0x41000000" % A_THR)
    a("s_waitcnt lgkmcnt(0)")
    srd(a, 44, 52, HD * M * 2)
    srd(a, 48, 54, F * M * 2)
    a("s_lshl_b32 s%d, s2, 3" % A_T0)
    a("s_add_u32 s%d, s%d, s%d" % (A_T0, A_T0, A_W))
    a("v_lshlrev_b32 v2, 4, v1")
    a("s_lshl_b32 s%d, s%d, 11" % (A_T1, A_T0))
    a("buffer_load_dwordx4 v[192:195], v2, s[44:47], s%d offen" % A_T1)
    a("buffer_load_dwordx4 v[196:199], v2, s[44:47], s%d offen offset:1024" % A_T1)
    a("s_lshl_b32 s%d, s%d, 10" % (A_T1, A_T0))
    a("buffer_load_dwordx4 v[200:203], v2, s[48:51], s%d offen" % A_T1)
    for srdn, off, sz in ((ASRD_Q, WS_Q, SZ_QKV), (ASRD_K, WS_K, SZ_QKV), (ASRD_V, WS_V, SZ_QKV), (ASRD_Y, WS_Y, SZ_Y)):
        add64(a, A_P0 + 2, A_P0, off)
        srd(a, srdn, A_P0 + 2, sz)
    T = VT
    a("v_lshrrev_b32 v%d, 5, v1" % T)
    a("v_and_b32 v%d, 31, v1" % (T + 1))
    a("v_and_b32 v%d, 15, v1" % (T + 2))
    a("s_mul_i32 s%d, s%d, %d" % (A_HB, A_HF, HALF_BYTES))
    a("v_lshlrev_b32 v%d, 4, v%d" % (VKA, T + 1))
    a("v_lshl_add_u32 v%d, v%d, 10, v%d" % (VKA, T, VKA))
    a("v_add_u32 v%d, s%d, v%d" % (VKA, A_HB, VKA))
    a("v_lshrrev_b32 v%d, 2, v%d" % (T + 3, T + 2))
    a("v_and_b32 v%d, 3, v%d" % (T + 4, T + 2))
    a("v_bfe_u32 v%d, v1, 4, 1" % (T + 5))
    a("v_lshrrev_b32 v%d, 1, v%d" % (T + 6, T + 4))
    a("v_lshl_add_u32 v%d, v%d, 1, v%d" % (T + 5, T + 5, T + 6))
    a("v_mul_u32_u24 v%d, %d, v%d" % (T + 5, VPAD, T + 5))
    a("v_lshl_add_u32 v%d, v%d, 2, v%d" % (T + 6, T, T + 3))
    a("v_lshl_add_u32 v%d, v%d, 4, v%d" % (T + 5, T + 6, T + 5))
    a("v_and_b32 v%d, 1, v%d" % (T + 6, T + 4))
    a("v_lshl_add_u32 v%d, v%d, 3, v%d" % (T + 5, T + 6, T + 5))
    a("s_add_u32 s%d, s%d, %d" % (A_T1, A_HB, KT_BYTES))
    a("v_add_u32 v%d, s%d, v%d" % (VVA, A_T1, T + 5))
    a("v_lshlrev_b32 v%d, 4, v1" % VDM)
    a("s_lshl_b32 s%d, s%d, 5" % (A_T1, A_WQ))
    a("s_lshl_b32 s%d, s%d, 6" % (A_T2, A_HF))
    a("s_sub_u32 s%d, s%d, s%d" % (A_T1, A_T1, A_T2))
    a("v_add_u32 v%d, s%d, v%d" % (VTHR, A_T1, T + 1))
    a("v_lshlrev_b32 v%d, 2, v%d" % (T + 3, T))
    a("v_sub_u32 v%d, v%d, v%d" % (VTHR, VTHR, T + 3))
    a("v_mov_b32 v%d, 0xff800000" % VNEG)
    a("s_lshl_b32 s%d, s%d, 5" % (A_T1, A_WQ))
    a("v_add_u32 v%d, s%d, v%d" % (VQO, A_T1, T + 1))
    a("v_lshlrev_b32 v%d, 4, v%d" % (VQO, VQO))
    a("v_lshl_add_u32 v%d, v%d, 11, v%d" % (VQO, T, VQO))
    a("s_lshl_b32 s%d, s%d, 15" % (A_BASE, A_HD))
    a("s_lshl_b32 s%d, s%d, 10" % (A_T0, A_HF))
    a("s_add_u32 s%d, s%d, s%d" % (A_BASE, A_BASE, A_T0))
    a("s_mov_b32 s%d, 0" % A_PHASE)
    a("s_mov_b32 s%d, 0" % A_PAR)

    def dma_piece(isv, jj, par, sg):
        if isv:
            a("s_mul_i32 s%d, s%d, %d" % (A_T1, A_WQ, VPAD))
            a("s_add_u32 s%d, s%d, s%d" % (A_T1, A_T1, A_HB))
            a("s_add_u32 m0, s%d, %d" % (A_T1, par * STG_BYTES + KT_BYTES + jj * 4 * VPAD))
        else:
            a("s_lshl_b32 s%d, s%d, 10" % (A_T1, A_WQ))
            a("s_add_u32 s%d, s%d, s%d" % (A_T1, A_T1, A_HB))
            a("s_add_u32 m0, s%d, %d" % (A_T1, par * STG_BYTES + jj * 4096))
        a("s_lshl_b32 s%d, s%d, 11" % (A_T0, A_WQ))
        a("s_add_u32 s%d, s%d, s%d" % (A_T0, A_T0, sg))
        a("s_add_u32 s%d, s%d, %d" % (A_T0, A_T0, jj * 4 * 2048))
        srdn = ASRD_V if isv else ASRD_K
        a("buffer_load_dwordx4 v%d, s[%d:%d], s%d offen lds" % (VDM, srdn, srdn + 3, A_T0))

    a("s_mov_b32 s%d, s%d" % (A_KG, A_BASE))
    for jj in range(4):
        dma_piece(False, jj, 0, A_KG)
    for jj in range(4):
        dma_piece(True, jj, 0, A_KG)

    def sm_list(sb):
        raise NotImplementedError

    def make_sm(sb, pf):
        t = T
        L = []
        L.append("v_max3_f32 v%d, v%d, v%d, v%d" % (t, sb, sb + 1, sb + 2))
        for r in range(3, 15, 2):
            L.append("v_max3_f32 v%d, v%d, v%d, v%d" % (t, t, sb + r, sb + r + 1))
        L.append("v_max_f32 v%d, v%d, v%d" % (t, t, sb + 15))
        L.append("v_mov_b32 v%d, v%d" % (T + 2, t))
        L.append("v_permlane32_swap_b32 v%d, v%d" % (t, T + 2))
        L.append("v_max_f32 v%d, v%d, v%d" % (t, t, T + 2))
        L.append("v_sub_f32 v%d, v%d, v%d" % (T + 2, t, VM))
        L.append("v_mul_f32 v%d, s%d, v%d" % (T + 2, A_C, T + 2))
        L.append("v_cmp_lt_f32 vcc, s%d, v%d" % (A_THR, T + 2))

        def head():
            lab = a.uid("AT_NR")
            a("v_mov_b32 v%d, 1.0" % (T + 3))
            a("s_mov_b64 s[%d:%d], vcc" % (A_MSK, A_MSK + 1))
            a("s_nop 3")
            a("s_cbranch_vccz %s" % lab)
            a("v_max_f32 v%d, v%d, v%d" % (T + 2, t, VM))
            a("v_sub_f32 v%d, v%d, v%d" % (T + 3, VM, T + 2))
            a("v_mul_f32 v%d, s%d, v%d" % (T + 3, A_C, T + 3))
            a("v_exp_f32 v%d, v%d" % (T + 3, T + 3))
            a("v_mov_b32 v%d, v%d" % (VM, T + 2))
            a.label(lab)
        L.append(head)
        L.append("v_mul_f32 v%d, s%d, v%d" % (T + 4, A_C, VM))
        for r in range(16):
            L.append("v_fma_f32 v%d, v%d, s%d, -v%d" % (sb + r, sb + r, A_C, T + 4))
        for r in range(16):
            L.append("v_exp_f32 v%d, v%d" % (sb + r, sb + r))
        for r in range(4):
            L.append("v_add_f32 v%d, v%d, v%d" % (T + 5 + r, sb + r, sb + r + 4))
        for r in range(8, 16):
            L.append("v_add_f32 v%d, v%d, v%d" % (T + 5 + (r & 3), T + 5 + (r & 3), sb + r))
        for c2 in range(2):
            for d2 in range(4):
                L.append("v_cvt_pk_bf16_f32 v%d, v%d, v%d" % (pf + 4 * c2 + d2, sb + 8 * c2 + 2 * d2, sb + 8 * c2 + 2 * d2 + 1))
        L.append("v_add_f32 v%d, v%d, v%d" % (T + 5, T + 5, T + 6))
        L.append("v_add_f32 v%d, v%d, v%d" % (T + 7, T + 7, T + 8))
        L.append("v_add_f32 v%d, v%d, v%d" % (T + 5, T + 5, T + 7))
        L.append("v_fma_f32 v%d, v%d, v%d, v%d" % (VL, VL, T + 3, T + 5))
        return L

    SM_SPLIT = 38

    def emit_items(L, n):
        for _ in range(n):
            if not L:
                return
            it = L.pop(0)
            if callable(it):
                it()
            else:
                a(it)

    def rescale_point():
        lab = a.uid("AT_RS")
        a("s_cmp_eq_u64 s[%d:%d], 0" % (A_MSK, A_MSK + 1))
        a("s_cbranch_scc1 %s" % lab)
        for r in range(64):
            a("v_mul_f32 v%d, v%d, v%d" % (OA + r, T + 3, OA + r))
        a.label(lab)

    def mask_block(par):
        for kb in range(2):
            sb = SAB[(par, kb)]
            for r in range(16):
                cst = 32 * kb + 8 * (r >> 2) + (r & 3)
                a("v_cmp_gt_i32 vcc, %d, v%d" % (cst, VTHR))
                a("s_nop 1")
                a("v_cndmask_b32 v%d, v%d, v%d, vcc" % (sb + r, sb + r, VNEG))

    class Stream:
        def __init__(self):
            self.q = LdsQueue(a)
            self.kn = 0
            self.vn = 0

        def kread(self, kb, s, kpar):
            sl = KR + 4 * (self.kn % 4)
            self.kn += 1
            a("ds_read_b128 v[%d:%d], v%d offset:%d" % (sl, sl + 3, VKA, kpar * STG_BYTES + s * 2048 + kb * 512))
            return (sl, self.q.issue())

        def vread(self, ks, db, vpar):
            sl = VRG + 4 * (self.vn % 4)
            self.vn += 1
            base = vpar * STG_BYTES + db * 4 * VPAD + ks * 256
            a("ds_read_b64_tr_b16 v[%d:%d], v%d offset:%d" % (sl, sl + 1, VVA, base))
            self.q.issue()
            a("ds_read_b64_tr_b16 v[%d:%d], v%d offset:%d" % (sl + 2, sl + 3, VVA, base + 128))
            return (sl, self.q.issue())

    def run_phases(phases, dmas, pre_items=None):
        st = Stream()
        slots = []
        for ph in phases:
            for j in range(8):
                slots.append((ph, j))
        LA = 3
        reads = {}

        def issue_read(i):
            if i >= len(slots) or i in reads:
                return
            ph, j = slots[i]
            if ph["kind"] == "qk":
                reads[i] = st.kread(ph["kb"], j, ph["kpar"])
            else:
                ks = ph["ks0"] + j // 4
                reads[i] = st.vread(ks, j % 4, ph["vpar"])
        for i in range(min(LA, len(slots))):
            issue_read(i)
        if pre_items:
            emit_items(pre_items, 6)
        for i, (ph, j) in enumerate(slots):
            if j == 0 and ph.get("before"):
                ph["before"]()
            sl, idx = reads[i]
            st.q.need(idx)
            if ph["kind"] == "qk":
                acc = ph["sb"]
                a("v_mfma_f32_32x32x16_bf16 v[%d:%d], v[%d:%d], v[%d:%d], %s" % (
                    acc, acc + 15, sl, sl + 3, FQ + 4 * j, FQ + 4 * j + 3, "0" if j == 0 else "v[%d:%d]" % (acc, acc + 15)))
            else:
                acc = OA + 16 * (j % 4)
                pf = ph["pf"] + 4 * (j // 4)
                a("v_mfma_f32_32x32x16_bf16 v[%d:%d], v[%d:%d], v[%d:%d], v[%d:%d]" % (
                    acc, acc + 15, sl, sl + 3, pf, pf + 3, acc, acc + 15))
            issue_read(i + LA)
            if dmas and i % 2 == 1:
                dmas.pop(0)()
            if ph.get("valu") is not None:
                emit_items(ph["valu"], ph.get("per", 5))
            if j == 7 and ph.get("after"):
                ph["after"]()
        while dmas:
            dmas.pop(0)()

    def iter_dmas(par):
        L = []
        for jj in range(4):
            def fk(jj=jj):
                lab = a.uid("AT_DK")
                a("s_cmp_eq_u32 s%d, 0" % A_DOK)
                a("s_cbranch_scc1 %s" % lab)
                dma_piece(False, jj, par, A_KG)
                a.label(lab)
            L.append(fk)
        for jj in range(4):
            def fv(jj=jj):
                lab = a.uid("AT_DV")
                a("s_cmp_eq_u32 s%d, 0" % A_DOV)
                a("s_cbranch_scc1 %s" % lab)
                dma_piece(True, jj, par ^ 1, A_VG)
                a.label(lab)
            L.append(fv)
        return L

    def dma_targets(tail):
        a("s_add_u32 s%d, s%d, 1" % (A_T0, A_IT))
        a("s_mov_b32 s%d, 1" % A_DOV)
        a("s_cmp_le_u32 s%d, s%d" % (A_T0, A_QB))
        lab = a.uid("AT_VT")
        a("s_cbranch_scc1 %s" % lab)
        a("s_mov_b32 s%d, 0" % A_T0)
        a("s_cmp_eq_u32 s%d, 0" % A_PHASE)
        a("s_cselect_b32 s%d, 1, 0" % A_DOV)
        a.label(lab)
        a("s_lshl_b32 s%d, s%d, 20" % (A_T0, A_T0))
        a("s_add_u32 s%d, s%d, s%d" % (A_VG, A_T0, A_BASE))
        if tail:
            a("s_mov_b32 s%d, 0" % A_DOK)
            return
        a("s_add_u32 s%d, s%d, 2" % (A_T0, A_IT))
        a("s_mov_b32 s%d, 1" % A_DOK)
        a("s_cmp_le_u32 s%d, s%d" % (A_T0, A_QB))
        lab = a.uid("AT_KT")
        a("s_cbranch_scc1 %s" % lab)
        a("s_mov_b32 s%d, 0" % A_T0)
        a("s_cmp_eq_u32 s%d, 0" % A_PHASE)
        a("s_cselect_b32 s%d, 1, 0" % A_DOK)
        a.label(lab)
        a("s_lshl_b32 s%d, s%d, 20" % (A_T0, A_T0))
        a("s_add_u32 s%d, s%d, s%d" % (A_KG, A_T0, A_BASE))

    def diag_mask_if_next(par_next):
        lab = a.uid("AT_MK")
        a("s_add_u32 s%d, s%d, 1" % (A_T0, A_IT))
        a("s_cmp_eq_u32 s%d, s%d" % (A_T0, A_QB))
        a("s_cbranch_scc0 %s" % lab)
        mask_block(par_next)
        a.label(lab)

    def steady(par):
        p, n_ = par, par ^ 1
        dma_targets(False)
        a("s_waitcnt vmcnt(0)")
        a("s_barrier")
        smA_cur = make_sm(SAB[(p, 0)], PFA)[SM_SPLIT:]
        smB = make_sm(SAB[(p, 1)], PFB)
        smA_next = make_sm(SAB[(n_, 0)], PFA)[:SM_SPLIT]
        half = (len(smB) + 1) // 2
        smB1, smB2 = smB[:half], smB[half:]
        phases = [
            dict(kind="qk", kb=0, kpar=n_, sb=SAB[(n_, 0)], valu=smA_cur, per=5,
                 after=lambda: (emit_items(smA_cur, 1000), rescale_point())),
            dict(kind="pv", ks0=0, vpar=p, pf=PFA, valu=smB1, per=5, after=lambda: emit_items(smB1, 1000)),
            dict(kind="qk", kb=1, kpar=n_, sb=SAB[(n_, 1)], valu=smB2, per=5,
                 after=lambda: (emit_items(smB2, 1000), rescale_point(), diag_mask_if_next(n_))),
            dict(kind="pv", ks0=2, vpar=p, pf=PFB, valu=smA_next, per=5, after=lambda: emit_items(smA_next, 1000)),
        ]
        run_phases(phases, iter_dmas(p), pre_items=smA_cur)

    def tail(par):
        p = par
        dma_targets(True)
        a("s_waitcnt vmcnt(0)")
        a("s_barrier")
        smA_cur = make_sm(SAB[(p, 0)], PFA)[SM_SPLIT:]
        emit_items(smA_cur, 1000)
        rescale_point()
        smB = make_sm(SAB[(p, 1)], PFB)
        phases = [
            dict(kind="pv", ks0=0, vpar=p, pf=PFA, valu=smB, per=10,
                 after=lambda: (emit_items(smB, 1000), rescale_point())),
            dict(kind="pv", ks0=2, vpar=p, pf=PFB),
        ]
        dm = [f for f in iter_dmas(p)[4:]]
        run_phases(phases, dm)

    def prime(par):
        a("s_waitcnt vmcnt(0)")
        a("s_barrier")
        lab = a.uid("AT_PK")
        a("s_cmp_eq_u32 s%d, 0" % A_QB)
        a("s_cbranch_scc1 %s" % lab)
        a("s_add_u32 s%d, s%d, %d" % (A_KG, A_BASE, BS_Q))
        for jj in range(4):
            dma_piece(False, jj, par ^ 1, A_KG)
        a.label(lab)
        phases = [
            dict(kind="qk", kb=0, kpar=par, sb=SAB[(par, 0)]),
            dict(kind="qk", kb=1, kpar=par, sb=SAB[(par, 1)]),
        ]
        run_phases(phases, [])
        lab = a.uid("AT_PM")
        a("s_cmp_eq_u32 s%d, 0" % A_QB)
        a("s_cbranch_scc0 %s" % lab)
        mask_block(par)
        a.label(lab)
        emit_items(make_sm(SAB[(par, 0)], PFA)[:SM_SPLIT], 1000)

    a.label("AT_QBLOCK")
    a("s_sub_u32 s%d, 15, s%d" % (A_T0, A_P))
    a("s_cmp_eq_u32 s%d, 0" % A_PHASE)
    a("s_cselect_b32 s%d, s%d, s%d" % (A_QB, A_T0, A_P))
    a("s_lshl_b32 s%d, s%d, 20" % (A_T0, A_QB))
    a("s_lshl_b32 s%d, s%d, 15" % (A_T1, A_HD))
    a("s_add_u32 s%d, s%d, s%d" % (A_T0, A_T0, A_T1))
    for s in range(8):
        a("s_add_u32 s%d, s%d, %d" % (A_T1, A_T0, s * 4096))
        a("buffer_load_dwordx4 v[%d:%d], v%d, s[%d:%d], s%d offen" % (
            FQ + 4 * s, FQ + 4 * s + 3, VQO, ASRD_Q, ASRD_Q + 3, A_T1))
    for r in range(64):
        a("v_mov_b32 v%d, 0" % (OA + r))
    a("v_mov_b32 v%d, 0xf149f2ca" % VM)
    a("v_mov_b32 v%d, 0" % VL)
    a("s_mov_b32 s%d, 0" % A_IT)
    a("s_cmp_eq_u32 s%d, 0" % A_PAR)
    a("s_cbranch_scc0 AT_PRIME1")
    prime(0)
    a("s_branch AT_ITER")
    a.label("AT_PRIME1")
    prime(1)
    a.label("AT_ITER")
    a("s_cmp_lt_u32 s%d, s%d" % (A_IT, A_QB))
    a("s_cbranch_scc0 AT_TAIL")
    a("s_cmp_eq_u32 s%d, 0" % A_PAR)
    a("s_cbranch_scc0 AT_ST1")
    steady(0)
    a("s_branch AT_STN")
    a.label("AT_ST1")
    steady(1)
    a.label("AT_STN")
    a("s_xor_b32 s%d, s%d, 1" % (A_PAR, A_PAR))
    a("s_add_u32 s%d, s%d, 1" % (A_IT, A_IT))
    a("s_branch AT_ITER")
    a.label("AT_TAIL")
    a("s_cmp_eq_u32 s%d, 0" % A_PAR)
    a("s_cbranch_scc0 AT_TL1")
    tail(0)
    a("s_branch AT_TLN")
    a.label("AT_TL1")
    tail(1)
    a.label("AT_TLN")

    a("v_mov_b32 v%d, v%d" % (T, VL))
    a("v_permlane32_swap_b32 v%d, v%d" % (VL, T))
    a("v_add_f32 v%d, v%d, v%d" % (VL, VL, T))
    a("s_barrier")
    a("s_mul_i32 s%d, s%d, %d" % (A_T0, A_PAR, STG_BYTES))
    a("s_lshr_b32 s%d, s%d, 1" % (A_T1, A_WQ))
    a("s_mul_i32 s%d, s%d, %d" % (A_T1, A_T1, HALF_BYTES))
    a("s_add_u32 s%d, s%d, s%d" % (A_T0, A_T0, A_T1))
    a("s_and_b32 s%d, s%d, 1" % (A_T1, A_WQ))
    a("s_lshl_b32 s%d, s%d, 14" % (A_T1, A_T1))
    a("s_add_u32 s%d, s%d, s%d" % (A_T0, A_T0, A_T1))
    a("v_lshlrev_b32 v%d, 4, v1" % T)
    a("v_add_u32 v%d, s%d, v%d" % (T, A_T0, T))
    a("s_lshl_b32 s%d, s%d, 9" % (A_T1, A_WQ))
    a("s_add_u32 s%d, s%d, %d" % (A_T1, A_T1, AT_LDS_ML))
    a("v_lshlrev_b32 v%d, 3, v1" % (T + 1))
    a("v_add_u32 v%d, s%d, v%d" % (T + 1, A_T1, T + 1))
    a("s_cmp_eq_u32 s%d, 0" % A_HF)
    a("s_cbranch_scc1 AT_MERGE_WAIT")
    for g in range(16):
        a("ds_write_b128 v%d, v[%d:%d] offset:%d" % (T, OA + 4 * g, OA + 4 * g + 3, g * 1024))
    a("v_mov_b32 v%d, v%d" % (VX, VM))
    a("v_mov_b32 v%d, v%d" % (VX + 1, VL))
    a("ds_write_b64 v%d, v[%d:%d]" % (T + 1, VX, VX + 1))
    a("s_waitcnt lgkmcnt(0)")
    a.label("AT_MERGE_WAIT")
    a("s_barrier")
    a("s_cmp_eq_u32 s%d, 0" % A_HF)
    a("s_cbranch_scc0 AT_MERGE_DONE")
    PO = 64
    for g in range(16):
        a("ds_read_b128 v[%d:%d], v%d offset:%d" % (PO + 4 * g, PO + 4 * g + 3, T, g * 1024))
    a("ds_read_b64 v[%d:%d], v%d" % (VX, VX + 1, T + 1))
    a("s_waitcnt lgkmcnt(0)")
    a("v_max_f32 v%d, v%d, v%d" % (T + 4, VM, VX))
    a("v_sub_f32 v%d, v%d, v%d" % (T + 5, VM, T + 4))
    a("v_sub_f32 v%d, v%d, v%d" % (T + 6, VX, T + 4))
    a("v_mul_f32 v%d, s%d, v%d" % (T + 5, A_C, T + 5))
    a("v_mul_f32 v%d, s%d, v%d" % (T + 6, A_C, T + 6))
    a("v_exp_f32 v%d, v%d" % (T + 5, T + 5))
    a("v_exp_f32 v%d, v%d" % (T + 6, T + 6))
    a("v_mul_f32 v%d, v%d, v%d" % (T + 7, VL, T + 5))
    a("v_fma_f32 v%d, v%d, v%d, v%d" % (T + 7, VX + 1, T + 6, T + 7))
    a("v_rcp_f32 v%d, v%d" % (T + 7, T + 7))
    a("v_mul_f32 v%d, v%d, v%d" % (T + 5, T + 5, T + 7))
    a("v_mul_f32 v%d, v%d, v%d" % (T + 6, T + 6, T + 7))
    for r in range(64):
        a("v_mul_f32 v%d, v%d, v%d" % (OA + r, OA + r, T + 5))
    for r in range(64):
        a("v_fma_f32 v%d, v%d, v%d, v%d" % (OA + r, PO + r, T + 6, OA + r))
    a("s_mul_i32 s%d, s%d, %d" % (A_T1, A_QB, BS_Y))
    a("s_lshl_b32 s%d, s%d, 15" % (A_T2, A_HD))
    a("s_add_u32 s%d, s%d, s%d" % (A_T1, A_T1, A_T2))
    k = 0
    for db in range(4):
        for qp in range(2):
            dq = KR + 4 * (k & 3)
            for qi in range(2):
                r0 = OA + 16 * db + 4 * (2 * qp + qi)
                a("v_cvt_pk_bf16_f32 v%d, v%d, v%d" % (dq + 2 * qi, r0, r0 + 1))
                a("v_cvt_pk_bf16_f32 v%d, v%d, v%d" % (dq + 2 * qi + 1, r0 + 2, r0 + 3))
            a("v_permlane32_swap_b32 v%d, v%d" % (dq, dq + 2))
            a("v_permlane32_swap_b32 v%d, v%d" % (dq + 1, dq + 3))
            a("s_add_u32 s%d, s%d, %d" % (A_T2, A_T1, (4 * db + 2 * qp) * 2048))
            a("buffer_store_dwordx4 v[%d:%d], v%d, s[%d:%d], s%d offen" % (dq, dq + 3, VQO, ASRD_Y, ASRD_Y + 3, A_T2))
            k += 1
    a.label("AT_MERGE_DONE")
    a("s_xor_b32 s%d, s%d, 1" % (A_PAR, A_PAR))
    a("s_add_u32 s%d, s%d, 1" % (A_PHASE, A_PHASE))
    a("s_cmp_lt_u32 s%d, 2" % A_PHASE)
    a("s_cbranch_scc1 AT_QBLOCK")
    if CLK_STAMP:
        a("s_cmp_lg_u32 s2, 0")
        a("s_cbranch_scc1 AT_EXIT")
        a("s_cmp_lg_u32 s%d, 0" % A_W)
        a("s_cbranch_scc1 AT_EXIT")
        a("s_memtime s[64:65]")
        a("s_memrealtime s[66:67]")
        a("s_load_dwordx2 s[68:69], s[0:1], %d" % KA_DBG)
        a("s_waitcnt lgkmcnt(0)")
        a("s_sub_u32 s64, s64, s60")
        a("s_sub_u32 s66, s66, s62")
        srd(a, 72, 68, 256)
        a("v_mov_b32 v2, s64")
        a("v_mov_b32 v3, s66")
        a("v_mov_b32 v4, 0")
        a("buffer_store_dwordx2 v[2:3], v4, s[72:75], 0 offen")
    a.label("AT_EXIT")
    a("s_endpgm")
    return name, 256, AT_LDS, 256


GC_SPLIT = int(os.environ.get("GC_SPLIT", "4"))
GC_STAGES = KC // 32
GC_PER = (GC_STAGES + GC_SPLIT - 1) // GC_SPLIT
SZ_P = GC_SPLIT * S * M * 4


def gen_gemm_c(a):
    name = "gemmc_kernel"
    c = GemmCfg(2)
    c.NSLOT = int(os.environ.get("GC_NSLOT", "3"))
    kernel_header(a, name)
    NWG = 64 * GC_SPLIT
    a("s_cmp_ge_u32 s2, %d" % NWG)
    a("s_cbranch_scc1 GC_EXIT")
    a("s_and_b32 s%d, s2, 7" % S_T0)
    a("s_lshr_b32 s%d, s2, 3" % S_T1)
    a("s_lshl_b32 s%d, s%d, 1" % (S_MT, S_T0))
    a("s_and_b32 s%d, s%d, 1" % (S_T0, S_T1))
    a("s_add_u32 s%d, s%d, s%d" % (S_MT, S_MT, S_T0))
    a("s_lshr_b32 s%d, s%d, 1" % (S_NT, S_T1))
    a("s_and_b32 s%d, s%d, 3" % (S_NT, S_NT))
    a("s_lshr_b32 s%d, s%d, 3" % (S_FLAG, S_T1))
    P = S_P
    a("s_load_dwordx2 s[%d:%d], s[0:1], %d" % (P, P + 1, KA_WO))
    a("s_load_dwordx2 s[%d:%d], s[0:1], %d" % (P + 2, P + 3, KA_W2))
    a("s_load_dwordx2 s[%d:%d], s[0:1], %d" % (P + 4, P + 5, KA_WS))
    a("v_lshrrev_b32 v1, 6, v0")
    a("s_nop 0")
    a("v_readfirstlane_b32 s%d, v1" % S_W)
    a("s_nop 3")
    a("s_lshr_b32 s%d, s%d, 1" % (S_WN, S_W))
    a("s_and_b32 s%d, s%d, 1" % (S_WM, S_W))
    a("s_waitcnt lgkmcnt(0)")
    a("s_mov_b32 s%d, 1024" % S_WSTR)
    add64(a, P + 6, P + 4, WS_Y)
    srd(a, SRD_X, P + 6, SZ_Y)
    add64(a, P + 6, P + 4, WS_P)
    srd(a, SRD_O, P + 6, SZ_P)
    a("s_mul_i32 s%d, s%d, %d" % (S_PFG, S_FLAG, GC_PER))
    a("s_mov_b32 s%d, %d" % (S_NST, GC_PER))
    a("s_cmp_eq_u32 s%d, %d" % (S_FLAG, GC_SPLIT - 1))
    a("s_cselect_b32 s%d, %d, s%d" % (S_NST, GC_STAGES - (GC_SPLIT - 1) * GC_PER, S_NST))
    a("s_cmp_ge_u32 s%d, 128" % S_PFG)
    a("s_cbranch_scc1 GC_W2")
    srd(a, SRD_W, P, HD * M * 2)
    a("s_mov_b32 s%d, s%d" % (S_T1, S_PFG))
    a("s_branch GC_WSET")
    a.label("GC_W2")
    srd(a, SRD_W, P + 2, F * M * 2)
    a("s_sub_u32 s%d, s%d, 128" % (S_T1, S_PFG))
    a.label("GC_WSET")
    a("s_lshl_b32 s%d, s%d, 15" % (S_T1, S_T1))
    a("s_lshl_b32 s%d, s%d, 8" % (S_T0, S_NT))
    a("s_add_u32 s%d, s%d, s%d" % (S_T1, S_T1, S_T0))
    for j in range(c.NWPW):
        a("s_add_u32 s%d, s%d, %d" % (S_T0, S_W, 4 * j))
        a("s_mul_i32 s%d, s%d, %d" % (S_T0, S_T0, c.RPI * 1024))
        a("s_add_u32 s%d, s%d, s%d" % (S_WOFF + j, S_T0, S_T1))
    a("s_mov_b32 s%d, %d" % (S_WINC, 32 * 1024))
    for j in range(c.NXPW):
        a("s_mul_i32 s%d, s%d, %d" % (S_T0, S_MT, BS_Y))
        a("s_lshl_b32 s%d, s%d, 11" % (S_T1, S_W))
        a("s_add_u32 s%d, s%d, s%d" % (S_T0, S_T0, S_T1))
        a("s_lshl_b32 s%d, s%d, 13" % (S_T1, S_PFG))
        a("s_add_u32 s%d, s%d, s%d" % (S_T0, S_T0, S_T1))
        a("s_add_u32 s%d, s%d, %d" % (S_XOFF + j, S_T0, 1024 * j))
    gemm_lane_setup(a, c)
    hook_n = [0]

    def hook():
        hook_n[0] += 1
        lab = "GC_NOSW_%d" % hook_n[0]
        a("s_add_u32 s%d, s%d, 1" % (S_PFG, S_PFG))
        a("s_cmp_eq_u32 s%d, 128" % S_PFG)
        a("s_cbranch_scc0 %s" % lab)
        srd(a, SRD_W, P + 2, F * M * 2)
        for j in range(c.NWPW):
            a("s_sub_u32 s%d, s%d, %d" % (S_WOFF + j, S_WOFF + j, 128 * 32 * 1024))
        a.label(lab)

    gemm_mainloop(a, c, "gc", hook)
    a("s_lshl_b32 s%d, s%d, 22" % (S_T0, S_FLAG))
    a("s_lshl_b32 s%d, s%d, 2" % (S_T1, S_MT))
    a("s_add_u32 s%d, s%d, s%d" % (S_T1, S_T1, S_NT))
    a("s_lshl_b32 s%d, s%d, 16" % (S_T1, S_T1))
    a("s_add_u32 s%d, s%d, s%d" % (S_T0, S_T0, S_T1))
    a("s_lshl_b32 s%d, s%d, 14" % (S_T1, S_W))
    a("s_add_u32 s%d, s%d, s%d" % (S_T0, S_T0, S_T1))
    a("v_lshlrev_b32 v%d, 4, v1" % c.V_T)
    for blk in range(4):
        for qd in range(4):
            r = c.ACC + blk * 16 + qd * 4
            a("buffer_store_dwordx4 v[%d:%d], v%d, s[%d:%d], s%d offen offset:%d" % (
                r, r + 3, c.V_T, SRD_O, SRD_O + 3, S_T0, ((blk * 4 + qd) * 1024) % 4096))
            if (blk * 4 + qd) % 4 == 3:
                a("s_add_u32 s%d, s%d, 4096" % (S_T0, S_T0))
    a.label("GC_EXIT")
    a("s_endpgm")
    return name, c.ACC + c.NACC + 8, c.NSLOT * c.SLOT, NWG


def gen_reduce(a):
    name = "reduce_kernel"
    kernel_header(a, name)
    NWG = 1024
    a("s_cmp_ge_u32 s2, %d" % NWG)
    a("s_cbranch_scc1 RD_EXIT")
    a("s_load_dwordx2 s[4:5], s[0:1], %d" % KA_X)
    a("s_load_dwordx2 s[6:7], s[0:1], %d" % KA_B2)
    a("s_load_dwordx2 s[24:25], s[0:1], %d" % KA_OUT)
    a("s_load_dwordx2 s[26:27], s[0:1], %d" % KA_WS)
    a("s_lshl_b32 s3, s2, 8")
    a("v_add_u32 v1, s3, v0")
    a("v_lshlrev_b32 v2, 4, v1")
    a("v_and_b32 v3, 63, v1")
    a("v_bfe_u32 v4, v1, 6, 2")
    a("v_bfe_u32 v5, v1, 8, 2")
    a("v_bfe_u32 v6, v1, 10, 2")
    a("v_lshrrev_b32 v7, 12, v1")
    a("v_lshrrev_b32 v8, 2, v7")
    a("v_lshlrev_b32 v8, 7, v8")
    a("v_and_b32 v9, 1, v6")
    a("v_lshl_add_u32 v8, v9, 6, v8")
    a("v_and_b32 v9, 1, v5")
    a("v_lshl_add_u32 v8, v9, 5, v8")
    a("v_and_b32 v9, 31, v3")
    a("v_add_u32 v8, v8, v9")
    a("v_and_b32 v9, 3, v7")
    a("v_lshlrev_b32 v9, 7, v9")
    a("v_lshrrev_b32 v10, 1, v6")
    a("v_lshl_add_u32 v9, v10, 6, v9")
    a("v_lshrrev_b32 v10, 1, v5")
    a("v_lshl_add_u32 v9, v10, 5, v9")
    a("v_lshl_add_u32 v9, v4, 3, v9")
    a("v_lshrrev_b32 v10, 5, v3")
    a("v_lshl_add_u32 v9, v10, 2, v9")
    a("v_lshl_add_u32 v10, v8, 9, v9")
    a("v_lshlrev_b32 v10, 1, v10")
    a("v_lshlrev_b32 v11, 1, v9")
    a("s_waitcnt lgkmcnt(0)")
    srd(a, 8, 4, S * M * 2)
    srd(a, 12, 6, M * 2)
    srd(a, 16, 24, S * M * 2)
    add64(a, 26, 26, WS_P)
    srd(a, 20, 26, SZ_P)
    PB = 40
    for sp in range(GC_SPLIT):
        a("s_mov_b32 s28, %d" % (sp * S * M * 4))
        a("buffer_load_dwordx4 v[%d:%d], v2, s[20:23], s28 offen" % (PB + 4 * sp, PB + 3 + 4 * sp))
    a("buffer_load_dwordx2 v[28:29], v10, s[8:11], 0 offen")
    a("buffer_load_dwordx2 v[30:31], v11, s[12:15], 0 offen")
    a("s_waitcnt vmcnt(0)")
    for e in range(4):
        a("v_add_f32 v%d, v%d, v%d" % (12 + e, PB + e, PB + 4 + e))
    for sp in range(2, GC_SPLIT):
        for e in range(4):
            a("v_add_f32 v%d, v%d, v%d" % (12 + e, 12 + e, PB + 4 * sp + e))
    a("v_lshlrev_b32 v16, 16, v28")
    a("v_and_b32 v17, 0xffff0000, v28")
    a("v_lshlrev_b32 v18, 16, v29")
    a("v_and_b32 v19, 0xffff0000, v29")
    a("v_lshlrev_b32 v20, 16, v30")
    a("v_and_b32 v21, 0xffff0000, v30")
    a("v_lshlrev_b32 v22, 16, v31")
    a("v_and_b32 v23, 0xffff0000, v31")
    for e in range(4):
        a("v_add_f32 v%d, v%d, v%d" % (12 + e, 12 + e, 20 + e))
    for e in range(4):
        a("v_add_f32 v%d, v%d, v%d" % (12 + e, 12 + e, 16 + e))
    a("v_cvt_pk_bf16_f32 v12, v12, v13")
    a("v_cvt_pk_bf16_f32 v13, v14, v15")
    a("buffer_store_dwordx2 v[12:13], v10, s[16:19], 0 offen")
    a.label("RD_EXIT")
    a("s_endpgm")
    return name, 80, NWG


def build(out_path):
    a = Asm()
    descs, launches = [], []
    n, v, nwg = gen_ln(a)
    descs.append(kernel_desc(n, v))
    launches.append("; @launch kernel=%s grid=(%d,1,1) block=(256,1,1) lds=0" % (n, nwg))
    n, v, lds, nwg = gen_gemm_a(a)
    descs.append(kernel_desc(n, v))
    launches.append("; @launch kernel=%s grid=(%d,1,1) block=(256,1,1) lds=%d" % (n, nwg, lds))
    n, v, lds, nwg = gen_attn(a)
    descs.append(kernel_desc(n, v))
    launches.append("; @launch kernel=%s grid=(%d,1,1) block=(512,1,1) lds=%d" % (n, nwg, lds))
    n, v, lds, nwg = gen_gemm_c(a)
    descs.append(kernel_desc(n, v))
    launches.append("; @launch kernel=%s grid=(%d,1,1) block=(256,1,1) lds=%d" % (n, nwg, lds))
    n, v, nwg = gen_reduce(a)
    descs.append(kernel_desc(n, v))
    launches.append("; @launch kernel=%s grid=(%d,1,1) block=(256,1,1) lds=0" % (n, nwg))
    hdr = open("parallel_sum__compressed_kv_cla__dense_activation_gelu__prompt.s.ref").read()
    cmt = [ln for ln in hdr.splitlines() if ln.startswith(";") and "@launch" not in ln and "Override" not in ln and "grid=ceil" not in ln]
    txt = "\n".join(cmt) + "\n" + "\n".join(launches) + "\n"
    txt += '.amdgcn_target "amdgcn-amd-amdhsa--gfx950"\n.text\n' + a.text()
    txt += '.section .rodata,"a"\n' + "".join(descs)
    open(out_path, "w").write(txt)


if __name__ == "__main__":
    build(sys.argv[1] if len(sys.argv) > 1 else "k.s")
```
